```python
import torch

def _softmax(x, axis=-1):
    return torch.softmax(x, dim=axis)
def _gelu(x):
    return torch.nn.functional.gelu(x, approximate="tanh")
def _silu(x):
    return torch.nn.functional.silu(x)
def _sigmoid(x):
    return torch.sigmoid(x)
def _layernorm(x, axis=-1, eps=1e-5):
    m = x.mean(dim=axis, keepdim=True)
    v = x.var(dim=axis, keepdim=True, unbiased=False)
    return (x - m) / torch.sqrt(v + eps)
def _scatter_add(tgt, idx, src, axis=0):
    return tgt.clone().index_add_(axis, idx, src)
def _segment_sum(src, seg, n):
    out = torch.zeros((n,) + src.shape[1:], dtype=src.dtype)
    return out.index_add_(0, seg, src)
def _pad(x, pw):
    flat = tuple(v for pair in reversed(pw) for v in pair)
    return torch.nn.functional.pad(x, flat)

kernel_name = 'concat_heads__mha_block_cached__gqa_block_cached__near_ridge'

def setup_inputs():

    _w = (lambda a: (lambda t: t.to(torch.bfloat16) if t.is_floating_point() else t)(torch.as_tensor(a)))
    def _A_setup():
        B, Sq, D = 16, 160, 512
        H, Sk, Dh = 32, 1024, 128
        return {
            "x": _w((lambda *s: torch.randn(*s, dtype=torch.bfloat16) * 0.8)(B, Sq, D)),
            "k_cache": _w((lambda *s: torch.randn(*s, dtype=torch.bfloat16) * 0.8)(B, H, Sk, Dh)),
            "v_cache": _w((lambda *s: torch.randn(*s, dtype=torch.bfloat16) * 0.05)(B, H, Sk, Dh)),
            "wq": _w((lambda *s: torch.randn(*s, dtype=torch.bfloat16) * 0.8)(D, H * Dh) * (D ** -0.5)),
            "wo": _w((lambda *s: torch.randn(*s, dtype=torch.bfloat16) * 0.05)(H * Dh, D) * ((H * Dh) ** -0.5)),
        }
    _A_in = _A_setup()

    def _B_setup():
        B, Sq, D = 16, 160, 512
        Hq, Hkv, Sk, Dh = 32, 32, 1024, 128
        assert Hq % Hkv == 0, (Hq, Hkv)
        return {
            "x": _w((lambda *s: torch.randn(*s, dtype=torch.bfloat16) * 0.8)(B, Sq, D)),
            "k_cache": _w((lambda *s: torch.randn(*s, dtype=torch.bfloat16) * 0.8)(B, Hkv, Sk, Dh)),
            "v_cache": _w((lambda *s: torch.randn(*s, dtype=torch.bfloat16) * 0.05)(B, Hkv, Sk, Dh)),
            "wq": _w((lambda *s: torch.randn(*s, dtype=torch.bfloat16) * 0.8)(D, Hq * Dh) * (D ** -0.5)),
            "wo": _w((lambda *s: torch.randn(*s, dtype=torch.bfloat16) * 0.05)(Hq * Dh, D) * ((Hq * Dh) ** -0.5)),
        }
    _B_in = _B_setup()

    return {
        "A_x": _A_in["x"],
        "A_k_cache": _A_in["k_cache"],
        "A_v_cache": _A_in["v_cache"],
        "A_wq": _A_in["wq"],
        "A_wo": _A_in["wo"],
        "B_x": _B_in["x"],
        "B_k_cache": _B_in["k_cache"],
        "B_v_cache": _B_in["v_cache"],
        "B_wq": _B_in["wq"],
        "B_wo": _B_in["wo"],
    }

def reference(A_x, A_k_cache, A_v_cache, A_wq, A_wo, B_x, B_k_cache, B_v_cache, B_wq, B_wo):
    def _A_ref(x, k_cache, v_cache, wq, wo):
        B, Sq, D = x.shape
        H, Dh = 32, 128
        q = (lambda x, *d: x.permute(*d))((x @ wq).reshape(B, Sq, H, Dh), 0, 2, 1, 3)
        scores = torch.einsum("bhqd,bhkd->bhqk", q, k_cache) * (Dh ** -0.5)
        p = _softmax(scores, axis=-1)
        o = torch.einsum("bhqk,bhkd->bhqd", p, v_cache)
        return (lambda x, *d: x.permute(*d))(o, 0, 2, 1, 3).reshape(B, Sq, H * Dh) @ wo

    def _B_ref(x, k_cache, v_cache, wq, wo):
        B, Sq, D = x.shape
        Hq, Dh = 32, 128
        Hkv = k_cache.shape[1]
        rep = Hq // Hkv
        q = (lambda x, *d: x.permute(*d))((x @ wq).reshape(B, Sq, Hq, Dh), 0, 2, 1, 3)
        k = (lambda x, n, axis: torch.repeat_interleave(x, n, dim=axis))(k_cache, rep, axis=1)
        v = (lambda x, n, axis: torch.repeat_interleave(x, n, dim=axis))(v_cache, rep, axis=1)
        scores = torch.einsum("bhqd,bhkd->bhqk", q, k) * (Dh ** -0.5)
        p = _softmax(scores, axis=-1)
        o = torch.einsum("bhqk,bhkd->bhqd", p, v)
        return (lambda x, *d: x.permute(*d))(o, 0, 2, 1, 3).reshape(B, Sq, Hq * Dh) @ wo

    a = _A_ref(A_x, A_k_cache, A_v_cache, A_wq, A_wo)
    b = _B_ref(B_x, B_k_cache, B_v_cache, B_wq, B_wo)
    return torch.concatenate([a, b], axis=-1)
```

```python
def regs(prefix, start, n=1):
    return [f"{prefix}{start + k}" for k in range(n)]


def rtext(prefix, start, n=1):
    if n == 1:
        return f"{prefix}{start}"
    return f"{prefix}[{start}:{start + n - 1}]"


class Reg:
    def __init__(self, p, s, n=1):
        self.p, self.s, self.n = p, s, n

    def __str__(self):
        return rtext(self.p, self.s, self.n)

    def list(self):
        return regs(self.p, self.s, self.n)

    def sub(self, off, n=1):
        assert off + n <= self.n
        return Reg(self.p, self.s + off, n)


def V(s, n=1):
    return Reg('v', s, n)


def A(s, n=1):
    return Reg('a', s, n)


def S(s, n=1):
    return Reg('s', s, n)


def _rl(x):
    out = []
    for e in x:
        if isinstance(e, Reg):
            out += e.list()
        elif isinstance(e, str):
            out.append(e)
    return out


class Ins:
    __slots__ = ('text', 'kind', 'rd', 'wr', 'tag', 'srcc')

    def __init__(self, text, kind, rd=(), wr=(), tag=None, srcc=()):
        self.text = text
        self.kind = kind
        self.rd = set(_rl(rd))
        self.wr = set(_rl(wr))
        self.tag = tag
        self.srcc = _rl(srcc)

    def __repr__(self):
        return self.text


VALU_KINDS = ('valu', 'trans', 'perm')


class Prog:
    def __init__(self):
        self.ins = []

    def add(self, ins):
        self.ins.append(ins)
        return ins

    def raw(self, text, kind='salu', rd=(), wr=(), tag=None):
        return self.add(Ins(text, kind, rd, wr, tag))

    def label(self, name):
        self.add(Ins(f"{name}:", 'label'))

    def comment(self, t):
        self.add(Ins(f"; {t}", 'comment'))

    def s(self, op, dst, *src, wr_scc=True):
        rd = [x for x in src if isinstance(x, Reg) or (isinstance(x, str) and x in ('m0', 'vcc', 'exec', 'scc'))]
        wr = [dst] if dst is not None else []
        ops = ([str(dst)] if dst is not None else []) + [str(x) for x in src]
        return self.add(Ins(f"{op} {', '.join(ops)}", 'salu', rd, wr))

    def v(self, op, dst, *src, kind=None, extra_rd=(), extra_wr=()):
        def base(x):
            return x
        rd = []
        txt = []
        for x in src:
            if isinstance(x, tuple):
                rd.append(x[1])
                txt.append(f"{x[0]}{x[1]}")
            else:
                if isinstance(x, Reg) or (isinstance(x, str) and x in ('vcc', 'exec')):
                    rd.append(x)
                txt.append(str(x))
        if kind is None:
            kind = 'trans' if op.split('_')[1] in ('exp', 'rcp', 'log', 'rsq', 'sqrt') else 'valu'
        return self.add(Ins(f"{op} {dst}, {', '.join(txt)}", kind, rd + list(extra_rd), [dst] + list(extra_wr)))

    def mfma16(self, d, a, b, c):
        if isinstance(c, Reg):
            return self.add(Ins(f"v_mfma_f32_16x16x32_bf16 {d}, {a}, {b}, {c}", 'mfma', [a, b, c], [d], srcc=[c]))
        return self.add(Ins(f"v_mfma_f32_16x16x32_bf16 {d}, {a}, {b}, 0", 'mfma', [a, b], [d]))

    def ds_read(self, op, dst, addr, offset=0):
        assert 0 <= offset < 65536, offset
        return self.add(Ins(f"{op} {dst}, {addr} offset:{offset}", 'ds_rd', [addr], [dst]))

    def ds_write(self, op, addr, src, offset=0):
        assert 0 <= offset < 65536
        return self.add(Ins(f"{op} {addr}, {src} offset:{offset}", 'ds_wr', [addr, src], []))

    def buf_load(self, dst, voff, srd, soff, offset=0, tag=None, flags=''):
        assert 0 <= offset < 4096
        n = dst.n
        op = {1: 'buffer_load_dword', 2: 'buffer_load_dwordx2', 4: 'buffer_load_dwordx4'}[n]
        rd = [voff, srd] + ([soff] if isinstance(soff, Reg) else [])
        return self.add(Ins(f"{op} {dst}, {voff}, {srd}, {soff} offen offset:{offset}{flags}", 'vm_ld', rd, [dst], tag))

    def buf_dma(self, voff, srd, soff, offset=0, tag=None, flags=''):
        assert 0 <= offset < 4096
        rd = [voff, srd, 'm0'] + ([soff] if isinstance(soff, Reg) else [])
        return self.add(Ins(f"buffer_load_dwordx4 {voff}, {srd}, {soff} offen offset:{offset}{flags} lds", 'vm_dma', rd, [], tag))

    def buf_store(self, src, voff, srd, soff, offset=0, tag=None, flags=''):
        assert 0 <= offset < 4096
        n = src.n
        op = {1: 'buffer_store_dword', 2: 'buffer_store_dwordx2', 4: 'buffer_store_dwordx4'}[n]
        rd = [src, voff, srd] + ([soff] if isinstance(soff, Reg) else [])
        return self.add(Ins(f"{op} {src}, {voff}, {srd}, {soff} offen offset:{offset}{flags}", 'vm_st', rd, [], tag))

    def wait(self, vm=None, lgkm=None):
        t = []
        if vm is not None:
            t.append(f"vmcnt({vm})")
        if lgkm is not None:
            t.append(f"lgkmcnt({lgkm})")
        i = Ins("s_waitcnt " + " ".join(t), 'wait')
        i.tag = (vm, lgkm)
        return self.add(i)

    def wait_tag(self, tag):
        return self.add(Ins("", 'wait_tag', tag=tag))

    def barrier(self):
        return self.add(Ins("s_barrier", 'barrier'))

    def nop(self, n):
        return self.add(Ins(f"s_nop {n}", 'nop', tag=n))

    def branch(self, op, target):
        return self.add(Ins(f"{op} {target}", 'branch', rd=['scc'] if 'scc' in op else []))


def insert_waits(ins):
    out = []
    lg = []
    vm = []
    for i in ins:
        if i.kind == 'wait_tag':
            idx = None
            for k in range(len(vm) - 1, -1, -1):
                if vm[k][1] == i.tag:
                    idx = k
                    break
            if idx is not None:
                n = len(vm) - 1 - idx
                assert n <= 63
                w = Ins(f"s_waitcnt vmcnt({n})", 'wait')
                w.tag = (n, None)
                out.append(w)
                vm = vm[idx + 1:]
            continue
        if i.kind == 'wait':
            v, l = i.tag
            if v is not None:
                vm = vm[len(vm) - v:] if v < len(vm) else vm
                if v == 0:
                    vm = []
            if l is not None:
                lg = lg[len(lg) - l:] if l < len(lg) else lg
                if l == 0:
                    lg = []
            out.append(i)
            continue
        touched = i.rd | i.wr
        if touched:
            need_l = None
            for k in range(len(lg) - 1, -1, -1):
                if lg[k] & touched:
                    need_l = len(lg) - 1 - k
                    break
            need_v = None
            for k in range(len(vm) - 1, -1, -1):
                if vm[k][0] & touched:
                    need_v = len(vm) - 1 - k
                    break
            if need_l is not None or need_v is not None:
                t = []
                if need_v is not None:
                    assert need_v <= 63
                    t.append(f"vmcnt({need_v})")
                    vm = vm[len(vm) - need_v:] if need_v > 0 else []
                if need_l is not None:
                    need_l = min(need_l, 15)
                    t.append(f"lgkmcnt({need_l})")
                    lg = lg[len(lg) - need_l:] if need_l > 0 else []
                out.append(Ins("s_waitcnt " + " ".join(t), 'wait', tag=(need_v, need_l)))
        if i.kind == 'ds_rd':
            lg.append(set(i.wr))
        elif i.kind == 'ds_wr':
            lg.append(set())
        elif i.kind == 'vm_ld':
            vm.append((set(i.wr), i.tag))
        elif i.kind in ('vm_dma', 'vm_st'):
            vm.append((set(), i.tag))
        out.append(i)
    return out


def _states(i):
    if i.kind in ('label', 'comment', 'wait_tag'):
        return 0
    if i.kind == 'nop':
        return i.tag + 1
    return 1


def _required(p, c):
    need = 0
    pk, ck = p.kind, c.kind
    c_valu = ck in VALU_KINDS
    c_mem = ck in ('ds_rd', 'ds_wr', 'vm_ld', 'vm_dma', 'vm_st')
    if pk in VALU_KINDS:
        vw = {r for r in p.wr if r[0] in 'va' and r not in ('vcc',)}
        sw = {r for r in p.wr if r[0] == 's' or r == 'vcc'}
        if ck == 'mfma' and (vw & c.rd):
            need = max(need, 2)
        if ck == 'perm' and (vw & (c.rd | c.wr)):
            need = max(need, 2)
        if pk == 'trans' and c_valu and ck != 'trans' and (vw & c.rd):
            need = max(need, 1)
        if pk == 'trans' and (c_mem or ck == 'mfma') and (vw & c.rd):
            need = max(need, 2)
        if sw & c.rd:
            if c_valu:
                need = max(need, 2)
            if c_mem:
                need = max(need, 5)
            if ck in ('salu', 'branch'):
                need = max(need, 2)
        if c.text.startswith(('v_readfirstlane', 'v_readlane')) and (vw & c.rd):
            need = max(need, 1)
    if pk == 'mfma':
        d = p.wr
        if ck == 'mfma':
            cs = set(c.srcc)
            ab = c.rd - cs
            if d & ab:
                need = max(need, 8)
            if d & cs:
                if cs != d:
                    need = max(need, 6)
            if (d & c.wr) and not (d & cs):
                need = max(need, 8)
        elif c_valu or c_mem:
            if d & (c.rd | c.wr):
                need = max(need, 8)
    if pk == 'salu' and 'm0' in p.wr and ck == 'vm_dma':
        need = max(need, 1)
    if pk == 'vm_st' and c_valu:
        if p.rd & c.wr:
            need = max(need, 2)
    return need


def fix_hazards(ins, check_only=False):
    out = []
    viol = []
    WIN = 12
    for i in ins:
        if i.kind in ('label', 'comment'):
            out.append(i)
            continue
        dist = 0
        extra = 0
        for p in reversed(out):
            if dist >= WIN:
                break
            if p.kind in ('label', 'comment'):
                continue
            need = _required(p, i)
            if need > dist:
                extra = max(extra, need - dist)
            dist += _states(p)
        if extra > 0:
            if check_only:
                viol.append((i.text, extra))
            else:
                out.append(Ins(f"s_nop {extra - 1}", 'nop', tag=extra - 1))
        out.append(i)
    if check_only:
        return viol
    return out


def interleave(mf, fill, lead=0):
    out = list(fill[:lead])
    fill = fill[lead:]
    n = len(mf)
    if n == 0:
        return out + fill
    k = 0
    for idx, m in enumerate(mf):
        out.append(m)
        upto = (len(fill) * (idx + 1)) // n
        out += fill[k:upto]
        k = upto
    return out


def render(ins):
    lines = []
    for i in ins:
        if i.kind == 'label':
            lines.append(i.text)
        else:
            lines.append("    " + i.text)
    return "\n".join(lines) + "\n"
```

```python
import sys, os, math
sys.path.insert(0, os.path.dirname(__file__))
from asmlib import *

NAME = "concat_heads__mha_block_cached__gqa_block_cached__near_ridge"
K1 = NAME + "_kernel"
K2 = "oproj_kernel"

SCALE_LOG2E = (128 ** -0.5) * math.log2(math.e)
import struct


def fbits(x):
    return struct.unpack('<I', struct.pack('<f', x))[0]


THR_RAW = 8.0 / SCALE_LOG2E

NT = os.environ.get("KV_NT", "0") == "1"
KVFLAGS = " nt" if NT else ""

sKARG = S(0, 2)
sWG = S(2)
sPA = 4
sPB = 16
sWS = S(26, 2)
sW4096 = S(30)
sRND = S(31)
sB = S(32)
sH = S(33)
sPOFF = S(34)
sT0 = S(35)
sK = S(36, 4)
sV = S(40, 4)
sKN = S(44, 4)
sVN = S(48, 4)
sW = S(52, 4)
sX = S(56, 4)
sO = S(60, 4)
sKOFF = S(64)
sVOFF = S(65)
sCNT = S(66)
sC = S(67)
sT1 = S(68)
sT2 = S(69)
sCMP = S(70, 2)
sTHR = S(72)
sWOFF = S(73)
sT3 = S(74)
sT4 = S(75)

vS = [V(0, 40), V(40, 40)]
vP = V(80, 20)
vKf = V(100, 32)
vVf = V(132, 32)
vMREF = V(164, 5)
vMC = V(169, 5)
vL0 = V(174, 5)
vL1 = V(179, 5)
vMNEW = V(184, 5)
vTMP = V(189, 5)
vKa = V(194, 4)
vVa = V(198, 4)
vWa = V(202, 4)
vKd = V(206, 4)
vVd = V(210)
vWd = V(211)
vXo = V(212, 5)
vOo = V(217, 5)
vD = V(222)
vLANE = V(223)
vT = V(224, 16)
aO = A(0, 160)
aQ = A(160, 80)

LDS_K = 0
LDS_V = 32768
LDS_W = 49152
LDS_BYTES = 81920


def S_(buf, kt, n):
    return vS[buf].sub(kt * 20 + n * 4, 4)


def O_(T, n):
    return aO.sub(T * 20 + n * 4, 4)


def Q_(n, ds):
    return aQ.sub(n * 16 + ds * 4, 4)


def Kf_(kt, ds):
    return vKf.sub((kt * 4 + ds) * 4, 4)


def Vf_(T):
    return vVf.sub(T * 4, 4)


def sub_prog():
    return Prog()


def k1_setup(p):
    p.comment("---- setup")
    p.s("s_cmp_ge_u32", None, sWG, 512)
    p.branch("s_cbranch_scc1", "K1_END")
    p.raw(f"s_load_dwordx8 s[4:11], s[0:1], 0", wr=regs('s', 4, 8))
    p.raw(f"s_load_dwordx2 s[12:13], s[0:1], 32", wr=regs('s', 12, 2))
    p.raw(f"s_load_dwordx8 s[16:23], s[0:1], 40", wr=regs('s', 16, 8))
    p.raw(f"s_load_dwordx2 s[24:25], s[0:1], 72", wr=regs('s', 24, 2))
    p.raw(f"s_load_dwordx2 s[26:27], s[0:1], 96", wr=regs('s', 26, 2))
    p.v("v_and_b32", vLANE, 63, V(0))
    p.v("v_lshrrev_b32", vT.sub(0), 6, V(0))
    p.nop(1)
    p.add(Ins(f"v_readfirstlane_b32 {sT0}, {vT.sub(0)}", 'valu', [vT.sub(0)], [sT0]))
    p.nop(3)
    p.s("s_lshl_b32", sW4096, sT0, 12)
    p.s("s_mul_i32", sT4, sT0, 80)
    p.s("s_and_b32", sT1, sWG, 7)
    p.s("s_lshr_b32", sT2, sWG, 3)
    p.s("s_lshr_b32", sB, sT2, 2)
    p.s("s_and_b32", sT2, sT2, 3)
    p.s("s_lshl_b32", sT1, sT1, 2)
    p.s("s_add_u32", sH, sT1, sT2)
    p.s("s_lshl_b32", sT1, sB, 5)
    p.s("s_add_u32", sT1, sT1, sH)
    p.s("s_lshl_b32", sPOFF, sT1, 18)
    p.s("s_mov_b32", sC, hex(fbits(SCALE_LOG2E)))
    p.s("s_mov_b32", sTHR, hex(fbits(THR_RAW)))
    i_ = vT.sub(1)
    g_ = vT.sub(2)
    rp = vT.sub(3)
    cc = vT.sub(4)
    t5 = vT.sub(5)
    t6 = vT.sub(6)
    p.v("v_and_b32", i_, 15, vLANE)
    p.v("v_lshrrev_b32", g_, 4, vLANE)
    p.v("v_bfe_u32", rp, vLANE, 2, 2)
    p.v("v_and_b32", cc, 3, vLANE)
    for ds in range(4):
        p.v("v_add_u32", t5, 4 * ds, g_)
        p.v("v_xor_b32", t5, t5, i_)
        p.v("v_lshlrev_b32", t5, 4, t5)
        p.v("v_lshl_add_u32", vKa.sub(ds), i_, 8, t5)
    for u in range(4):
        p.v("v_xor_b32", t5, u, rp)
        p.v("v_lshl_add_u32", t5, t5, 2, cc)
        p.v("v_lshlrev_b32", t5, 4, t5)
        p.v("v_lshl_add_u32", t6, g_, 2, rp)
        p.v("v_lshl_add_u32", vVa.sub(u), t6, 8, t5)
        p.v("v_lshl_add_u32", t6, g_, 3, rp)
        p.v("v_lshl_add_u32", t6, t6, 8, t5)
        p.v("v_add_u32", vWa.sub(u), LDS_W, t6)
    for j in range(4):
        p.v("v_add_u32", t5, 4 * j, g_)
        p.v("v_xor_b32", t5, t5, i_)
        p.v("v_lshlrev_b32", t5, 4, t5)
        p.v("v_lshl_add_u32", vKd.sub(j), g_, 8, t5)
    p.v("v_lshlrev_b32", t5, 2, g_)
    p.v("v_xor_b32", t5, t5, i_)
    p.v("v_lshlrev_b32", t5, 4, t5)
    p.v("v_lshl_add_u32", vVd, g_, 8, t5)
    p.v("v_lshl_add_u32", vWd, g_, 13, t5)
    p.v("v_lshlrev_b32", t6, 4, g_)
    for n in range(5):
        p.v("v_add_u32", t5, sT4, i_)
        p.v("v_add_u32", t5, 16 * n, t5)
        p.v("v_lshl_add_u32", vXo.sub(n), t5, 10, t6)
        p.v("v_lshl_add_u32", vOo.sub(n), t5, 13, t6)
    p.wait(lgkm=0)
    for srd, pbase in ((sK, sPA + 2), (sV, sPA + 4), (sKN, sPB + 2), (sVN, sPB + 4)):
        p.s("s_add_u32", srd.sub(0), S(pbase), sPOFF)
        p.s("s_addc_u32", srd.sub(1), S(pbase + 1), 0)
        p.s("s_and_b32", srd.sub(1), srd.sub(1), 0xffff)
        p.s("s_mov_b32", srd.sub(2), 262144)
        p.s("s_mov_b32", srd.sub(3), 0x20000)
    p.s("s_mov_b32", sRND, 0)
    def kd(slot, tile):
        p.s("s_add_u32", "m0", sW4096, LDS_K + slot * 8192)
        p.s("s_add_u32", sKOFF, sW4096, tile * 8192)
        for j in range(4):
            p.buf_dma(vKd.sub(j), sK, sKOFF, j * 1024, flags=KVFLAGS)
    def vd(slot, tile):
        p.s("s_add_u32", "m0", sW4096, LDS_V + slot * 8192)
        p.s("s_add_u32", sVOFF, sW4096, tile * 8192)
        for j in range(4):
            p.buf_dma(vVd, sV, sVOFF, j * 1024, flags=KVFLAGS)
    kd(0, 0); kd(1, 1); kd(2, 2); vd(0, 0); kd(3, 3); vd(1, 1)


def k1_round_setup(p):
    p.comment("---- round setup")
    p.s("s_cmp_eq_u32", None, sRND, 0)
    p.s("s_cselect_b32", sX.sub(0), S(sPA + 0), S(sPB + 0))
    p.s("s_cselect_b32", sX.sub(1), S(sPA + 1), S(sPB + 1))
    p.s("s_cselect_b32", sW.sub(0), S(sPA + 6), S(sPB + 6))
    p.s("s_cselect_b32", sW.sub(1), S(sPA + 7), S(sPB + 7))
    p.s("s_mul_i32", sT1, sB, 163840)
    p.s("s_add_u32", sX.sub(0), sX.sub(0), sT1)
    p.s("s_addc_u32", sX.sub(1), sX.sub(1), 0)
    p.s("s_and_b32", sX.sub(1), sX.sub(1), 0xffff)
    p.s("s_mov_b32", sX.sub(2), 163840)
    p.s("s_mov_b32", sX.sub(3), 0x20000)
    p.s("s_lshl_b32", sT1, sH, 8)
    p.s("s_add_u32", sW.sub(0), sW.sub(0), sT1)
    p.s("s_addc_u32", sW.sub(1), sW.sub(1), 0)
    p.s("s_and_b32", sW.sub(1), sW.sub(1), 0xffff)
    p.s("s_sub_u32", sW.sub(2), 512 * 8192, sT1)
    p.s("s_mov_b32", sW.sub(3), 0x20000)
    p.s("s_mul_i32", sT2, sRND, 2560)
    p.s("s_mul_i32", sT3, sB, 160)
    p.s("s_add_u32", sT2, sT2, sT3)
    p.s("s_lshl_b32", sT2, sT2, 13)
    p.s("s_add_u32", sT2, sT2, sT1)
    p.s("s_add_u32", sO.sub(0), sWS.sub(0), sT2)
    p.s("s_addc_u32", sO.sub(1), sWS.sub(1), 0)
    p.s("s_and_b32", sO.sub(1), sO.sub(1), 0xffff)
    p.s("s_sub_u32", sO.sub(2), 160 * 8192, sT1)
    p.s("s_mov_b32", sO.sub(3), 0x20000)
    p.s("s_add_u32", sKOFF, sW4096, 4 * 8192)
    p.s("s_add_u32", sVOFF, sW4096, 2 * 8192)


def k1_qproj(p):
    p.comment("---- Q projection")
    Xs = [Reg('v', 0 + 20 * k, 20) for k in range(4)]
    Wf = [vVf, vKf]

    def w_dma(cs):
        buf = cs % 4
        for j in range(4):
            p.s("s_add_u32", "m0", sW4096, LDS_W + buf * 8192 + j * 1024)
            p.s("s_lshl_b32", sWOFF, sW4096, 5)
            p.s("s_add_u32", sWOFF, sWOFF, (32 * cs + 4 * j) * 8192)
            p.buf_dma(vWd, sW, sWOFF, 0, tag=('W', cs))

    def x_load(cs):
        for n in range(5):
            p.buf_load(Xs[cs % 4].sub(4 * n, 4), vXo.sub(n), sX, 0, cs * 64, tag=('X', cs))

    def tr_list(cs):
        q = sub_prog()
        buf = cs % 4
        for T in range(8):
            u, e = T // 2, T % 2
            for e2 in range(2):
                q.ds_read("ds_read_b64_tr_b16", Wf[cs % 2].sub(T * 4 + 2 * e2, 2), vWa.sub(u),
                          buf * 8192 + e2 * 1024 + 8 * e)
        return q.ins

    p.wait(lgkm=0)
    p.barrier()
    for cs in range(4):
        w_dma(cs)
    for cs in range(3):
        x_load(cs)
    p.wait_tag(('W', 0))
    p.wait(lgkm=0)
    p.barrier()
    p.ins += tr_list(0)
    for cs in range(16):
        if cs + 1 < 16:
            p.wait_tag(('W', cs + 1))
        p.wait(lgkm=0)
        p.barrier()
        if cs + 4 < 16:
            w_dma(cs + 4)
        if cs + 3 < 16:
            x_load(cs + 3)
        m = sub_prog()
        for n in range(5):
            for T in range(8):
                m.mfma16(O_(T, n), Wf[cs % 2].sub(T * 4, 4), Xs[cs % 4].sub(4 * n, 4),
                         O_(T, n) if cs > 0 else 0)
        fill = tr_list(cs + 1) if cs + 1 < 16 else []
        p.ins += interleave(m.ins, fill)
    k = 0
    for n in range(5):
        for ds in range(4):
            for half in range(2):
                src = O_(2 * ds + half, n)
                t = vT.sub((k % 2) * 8, 6)
                k += 1
                for r in range(4):
                    p.v("v_accvgpr_read_b32", t.sub(r), src.sub(r))
                p.v("v_cvt_pk_bf16_f32", t.sub(4), t.sub(0), t.sub(1))
                p.v("v_cvt_pk_bf16_f32", t.sub(5), t.sub(2), t.sub(3))
                p.v("v_accvgpr_write_b32", Q_(n, ds).sub(2 * half), t.sub(4))
                p.v("v_accvgpr_write_b32", Q_(n, ds).sub(2 * half + 1), t.sub(5))
    for k in range(160):
        p.v("v_accvgpr_write_b32", aO.sub(k), 0)
    for n in range(5):
        p.v("v_mov_b32", vL0.sub(n), 0)
        p.v("v_mov_b32", vL1.sub(n), 0)


def kfrag_reads(slot):
    q = sub_prog()
    for kt in range(2):
        for ds in range(4):
            q.ds_read("ds_read_b128", Kf_(kt, ds), vKa.sub(ds), LDS_K + slot * 8192 + kt * 4096)
    return q.ins


def vfrag_reads(slot):
    q = sub_prog()
    for T in range(8):
        u, e = T // 2, T % 2
        for e2 in range(2):
            q.ds_read("ds_read_b64_tr_b16", Vf_(T).sub(2 * e2, 2), vVa.sub(u),
                      LDS_V + slot * 8192 + e2 * 4096 + 8 * e)
    return q.ins


def qk_list(buf, n):
    q = sub_prog()
    for ds in range(4):
        for kt in range(2):
            q.mfma16(S_(buf, kt, n), Kf_(kt, ds), Q_(n, ds), S_(buf, kt, n) if ds > 0 else 0)
    return q.ins


def sm_list(buf, n):
    q = sub_prog()
    for kt in range(2):
        for r in range(4):
            s = S_(buf, kt, n).sub(r)
            q.v("v_fma_f32", s, s, sC, ('-', vMC.sub(n)))
    for kt in range(2):
        for r in range(4):
            s = S_(buf, kt, n).sub(r)
            q.v("v_exp_f32", s, s)
    for kt in range(2):
        for rr in range(2):
            q.v("v_cvt_pk_bf16_f32", vP.sub(n * 4 + 2 * kt + rr), S_(buf, kt, n).sub(2 * rr), S_(buf, kt, n).sub(2 * rr + 1))
    for r in range(4):
        for kt in range(2):
            L = (vL0, vL1)[kt].sub(n)
            q.v("v_add_f32", L, L, S_(buf, kt, n).sub(r))
    return q.ins


def pv_list(n):
    q = sub_prog()
    for T in range(8):
        q.mfma16(O_(T, n), Vf_(T), vP.sub(n * 4, 4), O_(T, n))
    return q.ins


def mx_list(buf, n):
    q = sub_prog()
    m = vMNEW.sub(n)
    t = vTMP.sub(n)
    a, b = S_(buf, 0, n), S_(buf, 1, n)
    q.v("v_max3_f32", m, a.sub(0), a.sub(1), a.sub(2))
    q.v("v_max3_f32", t, a.sub(3), b.sub(0), b.sub(1))
    q.v("v_max3_f32", m, m, b.sub(2), b.sub(3))
    q.v("v_max_f32", m, m, t)
    q.v("v_mov_b32", t, m)
    q.add(Ins(f"v_permlane32_swap_b32 {t}, {m}", 'perm', [t, m], [t, m]))
    q.v("v_max_f32", m, m, t)
    q.v("v_mov_b32", t, m)
    q.add(Ins(f"v_permlane16_swap_b32 {t}, {m}", 'perm', [t, m], [t, m]))
    q.v("v_max_f32", m, m, t)
    return q.ins


rescale_sites = []


def iteration(p, tm, do_qk=True, do_sm=True, kdma=True, vdma=True, first=False, pre_k=None, pre_v=None):
    cur = tm % 2
    nxt = 1 - cur
    p.wait(vm=16, lgkm=0)
    p.barrier()
    if pre_k:
        pre_k(p)
    if kdma:
        p.s("s_add_u32", "m0", sW4096, LDS_K + ((tm + 1) % 4) * 8192)
        p.nop(0)
        for j in range(4):
            p.buf_dma(vKd.sub(j), sK, sKOFF, j * 1024, flags=KVFLAGS)
        p.s("s_add_u32", sKOFF, sKOFF, 8192)
    if pre_v:
        pre_v(p)
    if vdma:
        p.s("s_add_u32", "m0", sW4096, LDS_V + ((tm + 3) % 4) * 8192)
        p.nop(0)
        for j in range(4):
            p.buf_dma(vVd, sV, sVOFF, j * 1024, flags=KVFLAGS)
        p.s("s_add_u32", sVOFF, sVOFF, 8192)
    if do_sm:
        p.ins += vfrag_reads(tm % 4)
    E = []
    QK = [qk_list(nxt, n) if do_qk else E for n in range(5)]
    SM = [sm_list(cur, n) if do_sm else E for n in range(5)]
    PV = [pv_list(n) if do_sm else E for n in range(5)]
    MX = [mx_list(nxt, n) if do_qk else E for n in range(5)]
    KR = kfrag_reads((tm + 2) % 4) if do_qk else E
    blocks = [
        (QK[0], SM[0]),
        (QK[1], SM[1]),
        (PV[0], SM[2]),
        (QK[2], SM[3]),
        (PV[1], SM[4]),
        (QK[3], MX[0] + MX[1]),
        (PV[2], MX[2]),
        (QK[4], MX[3]),
        (PV[3], KR),
        (PV[4], MX[4]),
    ]
    for mf, fl in blocks:
        p.ins += interleave(mf, fl)
    if do_qk:
        if first:
            for n in range(5):
                p.v("v_mov_b32", vMREF.sub(n), vMNEW.sub(n))
                p.v("v_mul_f32", vMC.sub(n), sC, vMNEW.sub(n))
        else:
            for n in range(5):
                p.v("v_sub_f32", vTMP.sub(n), vMNEW.sub(n), vMREF.sub(n))
            p.v("v_max3_f32", vD, vTMP.sub(0), vTMP.sub(1), vTMP.sub(2))
            p.v("v_max3_f32", vD, vD, vTMP.sub(3), vTMP.sub(4))
            p.add(Ins(f"v_cmp_gt_f32 {sCMP}, {vD}, {sTHR}", 'valu', [vD, sTHR], [sCMP]))
            p.nop(3)
            p.s("s_cmp_lg_u64", None, sCMP, 0)
            k = len(rescale_sites)
            rescale_sites.append(k)
            p.branch("s_cbranch_scc1", f"K1_RESC{k}")
            p.label(f"K1_RESC{k}_RET")


def rescale_block(p, k):
    p.label(f"K1_RESC{k}")
    p.nop(15)
    for n in range(5):
        m = vMNEW.sub(n)
        f = vTMP.sub(n)
        p.v("v_max_f32", m, m, vMREF.sub(n))
        p.v("v_sub_f32", f, vMREF.sub(n), m)
        p.v("v_mul_f32", f, sC, f)
        p.v("v_exp_f32", f, f)
        p.v("v_mov_b32", vMREF.sub(n), m)
        p.v("v_mul_f32", vMC.sub(n), sC, m)
        p.v("v_mul_f32", vL0.sub(n), vL0.sub(n), f)
        p.v("v_mul_f32", vL1.sub(n), vL1.sub(n), f)
    k2 = 0
    for T in range(8):
        for n in range(5):
            t = vT.sub((k2 % 4) * 4, 4)
            k2 += 1
            for r in range(4):
                p.v("v_accvgpr_read_b32", t.sub(r), O_(T, n).sub(r))
            for r in range(4):
                p.v("v_mul_f32", t.sub(r), t.sub(r), vTMP.sub(n))
            for r in range(4):
                p.v("v_accvgpr_write_b32", O_(T, n).sub(r), t.sub(r))
    p.nop(3)
    p.branch("s_branch", f"K1_RESC{k}_RET")


def k1_epilogue(p):
    p.comment("---- epilogue")
    p.nop(15)
    for n in range(5):
        l = vL0.sub(n)
        t = vTMP.sub(n)
        p.v("v_add_f32", l, l, vL1.sub(n))
        p.v("v_mov_b32", t, l)
        p.add(Ins(f"v_permlane32_swap_b32 {t}, {l}", 'perm', [t, l], [t, l]))
        p.v("v_add_f32", l, l, t)
        p.v("v_mov_b32", t, l)
        p.add(Ins(f"v_permlane16_swap_b32 {t}, {l}", 'perm', [t, l], [t, l]))
        p.v("v_add_f32", l, l, t)
        p.v("v_rcp_f32", l, l)
    k = 0
    for n in range(5):
        for u in range(4):
            t = V((k % 4) * 12, 12)
            k += 1
            for e in range(2):
                for r in range(4):
                    p.v("v_accvgpr_read_b32", t.sub(4 * e + r), O_(2 * u + e, n).sub(r))
            for r in range(8):
                p.v("v_mul_f32", t.sub(r), t.sub(r), vL0.sub(n))
            for r in range(4):
                p.v("v_cvt_pk_bf16_f32", t.sub(8 + r), t.sub(2 * r), t.sub(2 * r + 1))
            p.buf_store(t.sub(8, 4), vOo.sub(n), sO, 0, u * 64)


def gen_k1():
    p = Prog()
    p.label(K1)
    k1_setup(p)
    p.label("K1_ROUND")
    k1_round_setup(p)
    k1_qproj(p)
    p.ins += kfrag_reads(0)
    iteration(p, 3, do_qk=True, do_sm=False, first=True)
    p.s("s_mov_b32", sCNT, 0)
    p.label("K1_LOOP")
    iteration(p, 0)

    def prev(p):
        p.s("s_cmp_lg_u32", None, sCNT, 7)
        p.branch("s_cbranch_scc1", "K1_NSV")
        for k in range(4):
            p.s("s_mov_b32", sV.sub(k), sVN.sub(k))
        p.s("s_mov_b32", sVOFF, sW4096)
        p.label("K1_NSV")
    iteration(p, 1, pre_v=prev)
    iteration(p, 2)
    p.s("s_cmp_eq_u32", None, sCNT, 7)
    p.branch("s_cbranch_scc1", "K1_LAST")

    def prek(p):
        p.s("s_cmp_lg_u32", None, sCNT, 6)
        p.branch("s_cbranch_scc1", "K1_NSK")
        for k in range(4):
            p.s("s_mov_b32", sK.sub(k), sKN.sub(k))
        p.s("s_mov_b32", sKOFF, sW4096)
        p.label("K1_NSK")
    iteration(p, 3, pre_k=prek)
    p.s("s_add_u32", sCNT, sCNT, 1)
    p.branch("s_branch", "K1_LOOP")
    p.label("K1_LAST")
    iteration(p, 3, do_qk=False, do_sm=True, kdma=False, vdma=False)
    k1_epilogue(p)
    p.s("s_mov_b32", sKN.sub(2), 0)
    p.s("s_mov_b32", sVN.sub(2), 0)
    p.s("s_add_u32", sRND, sRND, 1)
    p.s("s_cmp_lt_u32", None, sRND, 2)
    p.branch("s_cbranch_scc1", "K1_ROUND")
    p.label("K1_END")
    p.raw("s_endpgm", 'end')
    for k in rescale_sites:
        rescale_block(p, k)
    ins = insert_waits(p.ins)
    ins = fix_hazards(ins)
    return ins


def gen_k2():
    p = Prog()
    p.label(K2)
    sP = S(4, 2)
    sPb = S(6, 2)
    sOUT = S(8, 2)
    sWSP = S(10, 2)
    sWO = S(12, 4)
    sOO = S(16, 4)
    sOT = S(20, 4)
    sWV = S(24)
    sBUF = S(25)
    sKO = S(26)
    t1, t2, t3, t4 = S(27), S(28), S(29), S(30)
    sNT = S(31)
    sBLK = S(32)
    sBB = S(33)
    vLn = V(0)
    vBo = V(2, 10)
    vAd = V(12)
    vAa = V(14, 2)
    vAf = [V(16, 16), V(32, 16)]
    vBf = [V(48 + 40 * k, 40) for k in range(3)]
    vT_ = V(168, 32)
    vSt = V(200, 10)
    vRa = V(210)
    vWa_ = V(211)
    aC = A(0, 160)

    def C_(T, n):
        return aC.sub(T * 40 + n * 4, 4)

    p.s("s_cmp_ge_u32", None, sWG, 256)
    p.branch("s_cbranch_scc1", "K2_END")
    p.raw("s_load_dwordx2 s[4:5], s[0:1], 32", wr=['s4', 's5'])
    p.raw("s_load_dwordx2 s[6:7], s[0:1], 72", wr=['s6', 's7'])
    p.raw("s_load_dwordx2 s[8:9], s[0:1], 80", wr=['s8', 's9'])
    p.raw("s_load_dwordx2 s[10:11], s[0:1], 96", wr=['s10', 's11'])
    p.v("v_lshrrev_b32", vT_.sub(0), 6, V(0))
    p.v("v_and_b32", vLn, 63, V(0))
    p.nop(1)
    p.add(Ins(f"v_readfirstlane_b32 {sWV}, {vT_.sub(0)}", 'valu', [vT_.sub(0)], [sWV]))
    p.nop(3)
    p.s("s_and_b32", t1, sWG, 7)
    p.s("s_lshr_b32", t2, sWG, 3)
    p.s("s_and_b32", sNT, t2, 7)
    p.s("s_lshr_b32", t2, t2, 3)
    p.s("s_lshl_b32", t1, t1, 2)
    p.s("s_add_u32", t1, t1, t2)
    p.s("s_lshr_b32", sBLK, t1, 4)
    p.s("s_and_b32", sBB, t1, 15)
    p.s("s_lshl_b32", sBUF, sWV, 14)
    i_, g_, rp, cc, t5, t6 = (vT_.sub(k) for k in range(1, 7))
    p.v("v_and_b32", i_, 15, vLn)
    p.v("v_lshrrev_b32", g_, 4, vLn)
    p.v("v_bfe_u32", rp, vLn, 2, 2)
    p.v("v_and_b32", cc, 3, vLn)
    p.s("s_lshl_b32", t3, sWV, 11)
    p.v("v_lshl_add_u32", t6, g_, 4, t3)
    for n in range(10):
        p.v("v_add_u32", t5, 16 * n, i_)
        p.v("v_lshl_add_u32", vBo.sub(n), t5, 13, t6)
    p.v("v_lshrrev_b32", t5, 3, vLn)
    p.v("v_and_b32", t6, 1, g_)
    p.v("v_lshlrev_b32", t6, 2, t6)
    p.v("v_and_b32", vAd, 7, vLn)
    p.v("v_xor_b32", vAd, vAd, t6)
    p.v("v_lshlrev_b32", vAd, 4, vAd)
    p.v("v_lshl_add_u32", vAd, t5, 10, vAd)
    for u in range(2):
        p.v("v_lshrrev_b32", t5, 1, rp)
        p.v("v_xor_b32", t5, u, t5)
        p.v("v_lshl_add_u32", t5, t5, 2, cc)
        p.v("v_lshlrev_b32", t5, 4, t5)
        p.v("v_lshl_add_u32", t6, g_, 3, rp)
        p.v("v_lshl_add_u32", t6, t6, 7, t5)
        p.v("v_add_u32", vAa.sub(u), sBUF, t6)
    p.v("v_lshlrev_b32", t6, 4, g_)
    for n in range(10):
        p.v("v_add_u32", t5, 16 * n, i_)
        p.v("v_lshl_add_u32", vSt.sub(n), t5, 11, t6)
    p.v("v_lshlrev_b32", vRa, 4, vLn)
    p.wait(lgkm=0)
    p.s("s_cmp_eq_u32", None, sBLK, 0)
    p.s("s_cselect_b32", sWO.sub(0), sP.sub(0), sPb.sub(0))
    p.s("s_cselect_b32", sWO.sub(1), sP.sub(1), sPb.sub(1))
    p.s("s_lshl_b32", t1, sNT, 7)
    p.s("s_add_u32", sWO.sub(0), sWO.sub(0), t1)
    p.s("s_addc_u32", sWO.sub(1), sWO.sub(1), 0)
    p.s("s_and_b32", sWO.sub(1), sWO.sub(1), 0xffff)
    p.s("s_sub_u32", sWO.sub(2), 4096 * 1024, t1)
    p.s("s_mov_b32", sWO.sub(3), 0x20000)
    p.s("s_mul_i32", t2, sBLK, 2560)
    p.s("s_mul_i32", t3, sBB, 160)
    p.s("s_add_u32", t2, t2, t3)
    p.s("s_lshl_b32", t2, t2, 13)
    p.s("s_add_u32", sOO.sub(0), sWSP.sub(0), t2)
    p.s("s_addc_u32", sOO.sub(1), sWSP.sub(1), 0)
    p.s("s_and_b32", sOO.sub(1), sOO.sub(1), 0xffff)
    p.s("s_mov_b32", sOO.sub(2), 160 * 8192)
    p.s("s_mov_b32", sOO.sub(3), 0x20000)
    p.s("s_mul_i32", t2, sBB, 160 * 2048)
    p.s("s_lshl_b32", t3, sBLK, 10)
    p.s("s_add_u32", t3, t3, t1)
    p.s("s_add_u32", t2, t2, t3)
    p.s("s_add_u32", sOT.sub(0), sOUT.sub(0), t2)
    p.s("s_addc_u32", sOT.sub(1), sOUT.sub(1), 0)
    p.s("s_and_b32", sOT.sub(1), sOT.sub(1), 0xffff)
    p.s("s_sub_u32", sOT.sub(2), 160 * 2048, t3)
    p.s("s_mov_b32", sOT.sub(3), 0x20000)
    p.s("s_lshl_b32", sKO, sWV, 20)

    def a_dma(ks):
        for j in range(4):
            p.s("s_add_u32", "m0", sBUF, (ks % 4) * 4096 + j * 1024)
            p.s("s_add_u32", t4, sKO, (32 * ks + 8 * j) * 1024)
            p.buf_dma(vAd, sWO, t4, 0, tag=('A', ks))

    def b_load(ks):
        for n in range(10):
            p.buf_load(vBf[ks % 3].sub(4 * n, 4), vBo.sub(n), sOO, 0, ks * 64, tag=('B', ks))

    def tr_list(ks):
        q = sub_prog()
        for T in range(4):
            u, e = T // 2, T % 2
            for e2 in range(2):
                q.ds_read("ds_read_b64_tr_b16", vAf[ks % 2].sub(T * 4 + 2 * e2, 2), vAa.sub(u),
                          (ks % 4) * 4096 + e2 * 512 + 8 * e)
        return q.ins

    for ks in range(4):
        a_dma(ks)
    for ks in range(2):
        b_load(ks)
    p.wait_tag(('A', 0))
    p.ins += tr_list(0)
    for ks in range(32):
        if ks + 1 < 32:
            p.wait_tag(('A', ks + 1))
        p.wait(lgkm=0)
        if ks + 4 < 32:
            a_dma(ks + 4)
        if ks + 2 < 32:
            b_load(ks + 2)
        m = sub_prog()
        for n in range(10):
            for T in range(4):
                m.mfma16(C_(T, n), vAf[ks % 2].sub(T * 4, 4), vBf[ks % 3].sub(4 * n, 4),
                         C_(T, n) if ks > 0 else 0)
        fill = tr_list(ks + 1) if ks + 1 < 32 else []
        p.ins += interleave(m.ins, fill)
    p.nop(15)
    p.wait(vm=0, lgkm=0)
    p.barrier()
    for dT in range(1, 4):
        slot = 3 - dT
        p.label(f"K2_W{dT}")
        p.s("s_add_u32", t1, sWV, dT)
        p.s("s_and_b32", t1, t1, 3)
        p.s("s_mul_i32", t2, t1, 30720)
        p.s("s_add_u32", t2, t2, slot * 10240)
        p.v("v_add_u32", vWa_, t2, vRa)
        for T in range(4):
            p.s("s_cmp_lg_u32", None, t1, T)
            p.branch("s_cbranch_scc1", f"K2_W{dT}_{T}")
            for n in range(10):
                p.ds_write("ds_write_b128", vWa_, C_(T, n), n * 1024)
            p.label(f"K2_W{dT}_{T}")
    p.wait(lgkm=0)
    p.barrier()
    p.s("s_mul_i32", t2, sWV, 30720)
    p.v("v_add_u32", vWa_, t2, vRa)
    for T in range(4):
        p.s("s_cmp_lg_u32", None, sWV, T)
        p.branch("s_cbranch_scc1", f"K2_R{T}")
        u, e = T // 2, T % 2
        for n in range(10):
            t = V(48 + (n % 2) * 20, 20)
            for sl in range(3):
                p.ds_read("ds_read_b128", t.sub(4 * sl, 4), vWa_, sl * 10240 + n * 1024)
            for r in range(4):
                p.v("v_accvgpr_read_b32", t.sub(12 + r), C_(T, n).sub(r))
            for sl in range(3):
                for r in range(4):
                    p.v("v_add_f32", t.sub(12 + r), t.sub(12 + r), t.sub(4 * sl + r))
            p.v("v_cvt_pk_bf16_f32", t.sub(16), t.sub(12), t.sub(13))
            p.v("v_cvt_pk_bf16_f32", t.sub(17), t.sub(14), t.sub(15))
            p.buf_store(t.sub(16, 2), vSt.sub(n), sOT, 0, u * 64 + e * 8)
        p.wait(vm=0, lgkm=0)
        p.label(f"K2_R{T}")
    p.label("K2_END")
    p.raw("s_endpgm", 'end')
    ins = insert_waits(p.ins)
    ins = fix_hazards(ins)
    return ins


HEADER = open(os.path.join(os.path.dirname(__file__), "header.txt")).read()


def descriptor(name, vg, sg, acc):
    return f""".amdhsa_kernel {name}
  .amdhsa_next_free_vgpr {vg}
  .amdhsa_next_free_sgpr {sg}
  .amdhsa_accum_offset {acc}
  .amdhsa_group_segment_fixed_size 0
  .amdhsa_kernarg_size 104
  .amdhsa_user_sgpr_count 2
  .amdhsa_user_sgpr_kernarg_segment_ptr 1
  .amdhsa_system_sgpr_workgroup_id_x 1
.end_amdhsa_kernel
"""


def main():
    k1 = gen_k1()
    k2 = gen_k2()
    out = HEADER
    out += f"; @launch kernel={K1} grid=(512,1,1) block=(128,1,1) lds={LDS_BYTES}\n"
    out += f"; @launch kernel={K2} grid=(256,1,1) block=(256,1,1) lds=122880\n"
    out += '.amdgcn_target "amdgcn-amd-amdhsa--gfx950"\n.text\n'
    out += f".globl {K1}\n.p2align 8\n.type {K1},@function\n"
    out += render(k1)
    out += f".globl {K2}\n.p2align 8\n.type {K2},@function\n"
    out += render(k2)
    out += '.section .rodata,"a"\n.p2align 6\n'
    out += descriptor(K1, 512, 96, 256)
    out += ".p2align 6\n"
    out += descriptor(K2, 512, 96, 256)
    dst = sys.argv[1] if len(sys.argv) > 1 else os.path.join(os.path.dirname(__file__), "..", "cdna_kernels", NAME + ".s")
    open(dst, "w").write(out)
    print("wrote", dst, len(out), "bytes;", len(k1), "+", len(k2), "instructions")


if __name__ == "__main__":
    main()
```

```python
import sys, os, math
sys.path.insert(0, os.path.dirname(__file__))
from asmlib import *

NAME = "concat_heads__mha_block_cached__gqa_block_cached__near_ridge"
K1 = NAME + "_kernel"
K2 = "oproj_kernel"

SCALE_LOG2E = (128 ** -0.5) * math.log2(math.e)
import struct


def fbits(x):
    return struct.unpack('<I', struct.pack('<f', x))[0]


THR_RAW = 8.0 / SCALE_LOG2E

NT = os.environ.get("KV_NT", "0") == "1"
KVFLAGS = " nt" if NT else ""

sKARG = S(0, 2)
sWG = S(2)
sPA = 4
sPB = 16
sWS = S(26, 2)
sW4096 = S(30)
sRND = S(31)
sB = S(32)
sH = S(33)
sPOFF = S(34)
sT0 = S(35)
sK = S(36, 4)
sV = S(40, 4)
sKN = S(44, 4)
sVN = S(48, 4)
sW = S(52, 4)
sX = S(56, 4)
sO = S(60, 4)
sKOFF = S(64)
sVOFF = S(65)
sCNT = S(66)
sC = S(67)
sT1 = S(68)
sT2 = S(69)
sCMP = S(70, 2)
sTHR = S(72)
sWOFF = S(73)
sT3 = S(74)
sT4 = S(75)
sT0OFF = S(83)
sW5120 = S(84)
sPIDX = S(85)
sW32 = S(86)

vS = [V(0, 40), V(40, 40)]
vP = V(80, 20)
vKf = V(100, 32)
vVf = V(132, 32)
vNM = V(164, 20)
vL = V(184, 20)
vONE = V(204, 4)
vMNEW = V(208, 5)
vTMP = V(213, 5)
vKa = V(218, 4)
vVa = V(222, 4)
vWa = V(226, 4)
vKd = V(230, 4)
vVd = V(234)
vWd = V(235)
vXo = V(236, 5)
vOo = V(241)
vD = V(242)
vLANE = V(243)
vT = V(244, 12)
aO = A(0, 160)
aQ = A(160, 80)

LDS_K = 0
LDS_V = 32768
LDS_W = 49152
LDS_BYTES = 81920


def S_(buf, kt, n):
    return vS[buf].sub(kt * 20 + n * 4, 4)


def O_(T, n):
    return aO.sub(T * 20 + n * 4, 4)


def Q_(n, ds):
    return aQ.sub(n * 16 + ds * 4, 4)


def Kf_(kt, ds):
    return vKf.sub((kt * 4 + ds) * 4, 4)


def Vf_(T):
    return vVf.sub(T * 4, 4)


def sub_prog():
    return Prog()


def k1_setup(p):
    p.comment("---- setup")
    p.s("s_cmp_ge_u32", None, sWG, 512)
    p.branch("s_cbranch_scc1", "K1_END")
    p.raw(f"s_load_dwordx8 s[4:11], s[0:1], 0", wr=regs('s', 4, 8))
    p.raw(f"s_load_dwordx2 s[12:13], s[0:1], 32", wr=regs('s', 12, 2))
    p.raw(f"s_load_dwordx8 s[16:23], s[0:1], 40", wr=regs('s', 16, 8))
    p.raw(f"s_load_dwordx2 s[24:25], s[0:1], 72", wr=regs('s', 24, 2))
    p.raw(f"s_load_dwordx2 s[26:27], s[0:1], 96", wr=regs('s', 26, 2))
    p.v("v_and_b32", vLANE, 63, V(0))
    p.v("v_lshrrev_b32", vT.sub(0), 6, V(0))
    p.nop(1)
    p.add(Ins(f"v_readfirstlane_b32 {sT0}, {vT.sub(0)}", 'valu', [vT.sub(0)], [sT0]))
    p.nop(3)
    p.s("s_lshl_b32", sW4096, sT0, 12)
    p.s("s_mul_i32", sT4, sT0, 80)
    p.s("s_mul_i32", sW5120, sT0, 5120)
    p.s("s_and_b32", sT1, sWG, 7)
    p.s("s_lshr_b32", sT2, sWG, 3)
    p.s("s_lshl_b32", sT3, sT1, 2)
    p.s("s_add_u32", sT3, sT3, sT2)
    p.s("s_and_b32", sT3, sT3, 31)
    p.s("s_lshl_b32", sT3, sT3, 13)
    p.s("s_add_u32", sT0OFF, sT3, sW4096)
    p.s("s_lshr_b32", sB, sT2, 2)
    p.s("s_and_b32", sT2, sT2, 3)
    p.s("s_lshl_b32", sT1, sT1, 2)
    p.s("s_add_u32", sH, sT1, sT2)
    p.s("s_lshl_b32", sT1, sB, 5)
    p.s("s_add_u32", sPIDX, sT1, sH)
    p.s("s_lshl_b32", sPOFF, sPIDX, 18)
    p.s("s_mov_b32", sC, hex(fbits(SCALE_LOG2E)))
    p.s("s_mov_b32", sTHR, hex(fbits(8.0)))
    i_ = vT.sub(1)
    g_ = vT.sub(2)
    rp = vT.sub(3)
    cc = vT.sub(4)
    t5 = vT.sub(5)
    t6 = vT.sub(6)
    p.v("v_and_b32", i_, 15, vLANE)
    p.v("v_lshrrev_b32", g_, 4, vLANE)
    p.v("v_bfe_u32", rp, vLANE, 2, 2)
    p.v("v_and_b32", cc, 3, vLANE)
    for k in range(4):
        p.v("v_mov_b32", vONE.sub(k), "0x3f803f80")
    for ds in range(4):
        p.v("v_add_u32", t5, 4 * ds, g_)
        p.v("v_xor_b32", t5, t5, i_)
        p.v("v_lshlrev_b32", t5, 4, t5)
        p.v("v_lshl_add_u32", vKa.sub(ds), i_, 8, t5)
    for u in range(4):
        p.v("v_xor_b32", t5, u, rp)
        p.v("v_lshl_add_u32", t5, t5, 2, cc)
        p.v("v_lshlrev_b32", t5, 4, t5)
        p.v("v_lshl_add_u32", t6, g_, 2, rp)
        p.v("v_lshl_add_u32", vVa.sub(u), t6, 8, t5)
        p.v("v_lshl_add_u32", t6, g_, 3, rp)
        p.v("v_lshl_add_u32", t6, t6, 8, t5)
        p.v("v_add_u32", vWa.sub(u), LDS_W, t6)
    for j in range(4):
        p.v("v_add_u32", t5, 4 * j, g_)
        p.v("v_xor_b32", t5, t5, i_)
        p.v("v_lshlrev_b32", t5, 4, t5)
        p.v("v_lshl_add_u32", vKd.sub(j), g_, 8, t5)
    p.v("v_lshlrev_b32", t5, 2, g_)
    p.v("v_xor_b32", t5, t5, i_)
    p.v("v_lshlrev_b32", t5, 4, t5)
    p.v("v_lshl_add_u32", vVd, g_, 8, t5)
    p.v("v_lshl_add_u32", vWd, g_, 13, t5)
    p.v("v_lshlrev_b32", t6, 4, g_)
    for n in range(5):
        p.v("v_add_u32", t5, sT4, i_)
        p.v("v_add_u32", t5, 16 * n, t5)
        p.v("v_lshl_add_u32", vXo.sub(n), t5, 10, t6)
    p.v("v_lshlrev_b32", vOo, 4, vLANE)
    p.wait(lgkm=0)
    for srd, pbase in ((sK, sPA + 2), (sV, sPA + 4), (sKN, sPB + 2), (sVN, sPB + 4)):
        p.s("s_add_u32", srd.sub(0), S(pbase), sPOFF)
        p.s("s_addc_u32", srd.sub(1), S(pbase + 1), 0)
        p.s("s_and_b32", srd.sub(1), srd.sub(1), 0xffff)
        p.s("s_mov_b32", srd.sub(2), 262144)
        p.s("s_mov_b32", srd.sub(3), 0x20000)
    p.s("s_mov_b32", sRND, 0)
    def kd(slot, tile):
        p.s("s_add_u32", "m0", sW4096, LDS_K + slot * 8192)
        p.s("s_add_u32", sKOFF, sT0OFF, tile * 8192)
        p.s("s_and_b32", sKOFF, sKOFF, 0x3ffff)
        for j in range(4):
            p.buf_dma(vKd.sub(j), sK, sKOFF, j * 1024, flags=KVFLAGS)
    def vd(slot, tile):
        p.s("s_add_u32", "m0", sW4096, LDS_V + slot * 8192)
        p.s("s_add_u32", sVOFF, sT0OFF, tile * 8192)
        p.s("s_and_b32", sVOFF, sVOFF, 0x3ffff)
        for j in range(4):
            p.buf_dma(vVd, sV, sVOFF, j * 1024, flags=KVFLAGS)
    kd(0, 0); kd(1, 1); kd(2, 2); vd(0, 0); kd(3, 3); vd(1, 1)


def k1_round_setup(p):
    p.comment("---- round setup")
    p.s("s_cmp_eq_u32", None, sRND, 0)
    p.s("s_cselect_b32", sX.sub(0), S(sPA + 0), S(sPB + 0))
    p.s("s_cselect_b32", sX.sub(1), S(sPA + 1), S(sPB + 1))
    p.s("s_cselect_b32", sW.sub(0), S(sPA + 6), S(sPB + 6))
    p.s("s_cselect_b32", sW.sub(1), S(sPA + 7), S(sPB + 7))
    p.s("s_mul_i32", sT1, sB, 163840)
    p.s("s_add_u32", sX.sub(0), sX.sub(0), sT1)
    p.s("s_addc_u32", sX.sub(1), sX.sub(1), 0)
    p.s("s_and_b32", sX.sub(1), sX.sub(1), 0xffff)
    p.s("s_mov_b32", sX.sub(2), 163840)
    p.s("s_mov_b32", sX.sub(3), 0x20000)
    p.s("s_lshl_b32", sT1, sH, 8)
    p.s("s_add_u32", sW.sub(0), sW.sub(0), sT1)
    p.s("s_addc_u32", sW.sub(1), sW.sub(1), 0)
    p.s("s_and_b32", sW.sub(1), sW.sub(1), 0xffff)
    p.s("s_sub_u32", sW.sub(2), 512 * 8192, sT1)
    p.s("s_mov_b32", sW.sub(3), 0x20000)
    p.s("s_lshl_b32", sT2, sRND, 9)
    p.s("s_add_u32", sT2, sT2, sPIDX)
    p.s("s_mul_i32", sT2, sT2, 40960)
    p.s("s_add_u32", sO.sub(0), sWS.sub(0), sT2)
    p.s("s_addc_u32", sO.sub(1), sWS.sub(1), 0)
    p.s("s_and_b32", sO.sub(1), sO.sub(1), 0xffff)
    p.s("s_mov_b32", sO.sub(2), 40960)
    p.s("s_mov_b32", sO.sub(3), 0x20000)
    p.s("s_add_u32", sKOFF, sT0OFF, 4 * 8192)
    p.s("s_and_b32", sKOFF, sKOFF, 0x3ffff)
    p.s("s_add_u32", sVOFF, sT0OFF, 2 * 8192)
    p.s("s_and_b32", sVOFF, sVOFF, 0x3ffff)


def k1_qproj(p):
    p.comment("---- Q projection")
    Xs = [Reg('v', 0 + 20 * k, 20) for k in range(4)]
    Wf = [vVf, vKf]

    def w_dma(cs):
        q = sub_prog()
        buf = cs % 4
        for j in range(4):
            q.s("s_add_u32", "m0", sW4096, LDS_W + buf * 8192 + j * 1024)
            q.s("s_add_u32", sWOFF, sW32, (32 * cs + 4 * j) * 8192)
            q.buf_dma(vWd, sW, sWOFF, 0, tag=('W', cs))
        return [q.ins[0:3], q.ins[3:6], q.ins[6:9], q.ins[9:12]]

    def x_load(cs):
        q = sub_prog()
        for n in range(5):
            q.buf_load(Xs[cs % 4].sub(4 * n, 4), vXo.sub(n), sX, 0, cs * 64, tag=('X', cs))
        return [[i] for i in q.ins]

    def tr_list(cs):
        q = sub_prog()
        buf = cs % 4
        for T in range(8):
            u, e = T // 2, T % 2
            for e2 in range(2):
                q.ds_read("ds_read_b64_tr_b16", Wf[cs % 2].sub(T * 4 + 2 * e2, 2), vWa.sub(u),
                          buf * 8192 + e2 * 1024 + 8 * e)
        return q.ins

    p.s("s_lshl_b32", sW32, sW4096, 5)
    p.wait(lgkm=0)
    p.barrier()
    for cs in range(4):
        for grp in w_dma(cs):
            p.ins += grp
    for cs in range(3):
        for grp in x_load(cs):
            p.ins += grp
    p.wait_tag(('W', 0))
    p.wait(lgkm=0)
    p.barrier()
    p.ins += tr_list(0)
    for cs in range(16):
        if cs + 1 < 16:
            p.wait_tag(('W', cs + 1))
        p.wait(lgkm=0)
        p.barrier()
        groups = []
        if cs + 4 < 16:
            groups += w_dma(cs + 4)
        if cs + 3 < 16:
            groups += x_load(cs + 3)
        m = sub_prog()
        for n in range(5):
            for T in range(8):
                m.mfma16(O_(T, n), Wf[cs % 2].sub(T * 4, 4), Xs[cs % 4].sub(4 * n, 4),
                         O_(T, n) if cs > 0 else 0)
        tr = tr_list(cs + 1) if cs + 1 < 16 else []
        seq = []
        nm = len(m.ins)
        pos = {}
        if os.environ.get("QP_IL", "1") == "0":
            for g in groups:
                p.ins += g
            groups = []
        for k, g in enumerate(groups):
            pos.setdefault(2 + (k * (nm - 4)) // max(1, len(groups)), []).extend(g)
        for k, t in enumerate(tr):
            pos.setdefault(1 + k * 2, []).append(t)
        for k, mi in enumerate(m.ins):
            seq.append(mi)
            seq += pos.get(k, [])
        p.ins += seq
    k = 0
    for n in range(5):
        for ds in range(4):
            for half in range(2):
                src = O_(2 * ds + half, n)
                t = vT.sub((k % 2) * 6, 6)
                k += 1
                for r in range(4):
                    p.v("v_accvgpr_read_b32", t.sub(r), src.sub(r))
                for r in range(4):
                    p.v("v_mul_f32", t.sub(r), sC, t.sub(r))
                p.v("v_cvt_pk_bf16_f32", t.sub(4), t.sub(0), t.sub(1))
                p.v("v_cvt_pk_bf16_f32", t.sub(5), t.sub(2), t.sub(3))
                p.v("v_accvgpr_write_b32", Q_(n, ds).sub(2 * half), t.sub(4))
                p.v("v_accvgpr_write_b32", Q_(n, ds).sub(2 * half + 1), t.sub(5))
    for k in range(160):
        p.v("v_accvgpr_write_b32", aO.sub(k), 0)
    for k in range(20):
        p.v("v_mov_b32", vL.sub(k), 0)
        p.v("v_mov_b32", vNM.sub(k), 0)


def kfrag_reads(slot):
    q = sub_prog()
    for kt in range(2):
        for ds in range(4):
            q.ds_read("ds_read_b128", Kf_(kt, ds), vKa.sub(ds), LDS_K + slot * 8192 + kt * 4096)
    return q.ins


def vfrag_reads(slot):
    q = sub_prog()
    for T in range(8):
        u, e = T // 2, T % 2
        for e2 in range(2):
            q.ds_read("ds_read_b64_tr_b16", Vf_(T).sub(2 * e2, 2), vVa.sub(u),
                      LDS_V + slot * 8192 + e2 * 4096 + 8 * e)
    return q.ins


def qk_list(buf, n):
    q = sub_prog()
    for ds in range(4):
        for kt in range(2):
            q.mfma16(S_(buf, kt, n), Kf_(kt, ds), Q_(n, ds), S_(buf, kt, n) if ds > 0 else vNM.sub(4 * n, 4))
    return q.ins


def sm_list(buf, n):
    q = sub_prog()
    for kt in range(2):
        for r in range(4):
            s = S_(buf, kt, n).sub(r)
            q.v("v_exp_f32", s, s)
    for kt in range(2):
        for rr in range(2):
            q.v("v_cvt_pk_bf16_f32", vP.sub(n * 4 + 2 * kt + rr), S_(buf, kt, n).sub(2 * rr), S_(buf, kt, n).sub(2 * rr + 1))
    return q.ins


def pv_list(n):
    q = sub_prog()
    for T in range(8):
        q.mfma16(O_(T, n), Vf_(T), vP.sub(n * 4, 4), O_(T, n))
    q.mfma16(vL.sub(4 * n, 4), vONE, vP.sub(n * 4, 4), vL.sub(4 * n, 4))
    return q.ins


def mx_list(buf, n):
    q = sub_prog()
    m = vMNEW.sub(n)
    a, b = S_(buf, 0, n), S_(buf, 1, n)
    q.v("v_max3_f32", m, a.sub(0), a.sub(1), a.sub(2))
    q.v("v_max3_f32", m, m, a.sub(3), b.sub(0))
    q.v("v_max3_f32", m, m, b.sub(1), b.sub(2))
    q.v("v_max_f32", m, m, b.sub(3))
    return q.ins


def xlane_max(p, n):
    m = vMNEW.sub(n)
    t = vTMP.sub(n)
    p.v("v_mov_b32", t, m)
    p.add(Ins(f"v_permlane32_swap_b32 {t}, {m}", 'perm', [t, m], [t, m]))
    p.v("v_max_f32", m, m, t)
    p.v("v_mov_b32", t, m)
    p.add(Ins(f"v_permlane16_swap_b32 {t}, {m}", 'perm', [t, m], [t, m]))
    p.v("v_max_f32", m, m, t)


rescale_sites = []
INSTR = os.environ.get("INSTR", "0") == "1"
sST = S(76, 4)
sTM = S(80, 2)
sSTI = S(82)


def stamp_setup(p):
    if not INSTR:
        return
    p.s("s_lshl_b32", sT1, sWG, 9)
    p.s("s_add_u32", sT1, sT1, 1 << 27)
    p.s("s_add_u32", sST.sub(0), sWS.sub(0), sT1)
    p.s("s_addc_u32", sST.sub(1), sWS.sub(1), 0)
    p.s("s_and_b32", sST.sub(1), sST.sub(1), 0xffff)
    p.s("s_mov_b32", sST.sub(2), 512)
    p.s("s_mov_b32", sST.sub(3), 0x20000)
    p.s("s_lshr_b32", sSTI, sW4096, 4)


def stamp(p):
    if not INSTR:
        return
    p.raw(f"s_memtime {sTM}", wr=[sTM])
    p.wait(lgkm=0)
    p.v("v_mov_b32", vT.sub(10), sTM.sub(0))
    p.v("v_mov_b32", vT.sub(11), sTM.sub(1))
    p.v("v_mov_b32", vT.sub(9), sSTI)
    p.buf_store(vT.sub(10, 2), vT.sub(9), sST, 0, 0)
    p.s("s_add_u32", sSTI, sSTI, 8)


NODMA = os.environ.get("NODMA", "0") == "1"


def iteration(p, tm, do_qk=True, do_sm=True, kdma=True, vdma=True, first=False, pre_k=None, pre_v=None):
    cur = tm % 2
    nxt = 1 - cur
    p.wait(vm=16, lgkm=0)
    p.barrier()
    dg = []
    if kdma:
        q = sub_prog()
        if pre_k:
            pre_k(q)
        q.s("s_add_u32", "m0", sW4096, LDS_K + ((tm + 1) % 4) * 8192)
        q.nop(0)
        q.buf_dma(vKd.sub(0), sK, sKOFF, 0, flags=KVFLAGS)
        dg.append(q.ins)
        for j in range(1, 4):
            q = sub_prog()
            q.buf_dma(vKd.sub(j), sK, sKOFF, j * 1024, flags=KVFLAGS)
            if j == 3:
                q.s("s_add_u32", sKOFF, sKOFF, 8192)
                q.s("s_and_b32", sKOFF, sKOFF, 0x3ffff)
            dg.append(q.ins)
    if vdma:
        q = sub_prog()
        if pre_v:
            pre_v(q)
        q.s("s_add_u32", "m0", sW4096, LDS_V + ((tm + 3) % 4) * 8192)
        q.nop(0)
        q.buf_dma(vVd, sV, sVOFF, 0, flags=KVFLAGS)
        dg.append(q.ins)
        for j in range(1, 4):
            q = sub_prog()
            q.buf_dma(vVd, sV, sVOFF, j * 1024, flags=KVFLAGS)
            if j == 3:
                q.s("s_add_u32", sVOFF, sVOFF, 8192)
                q.s("s_and_b32", sVOFF, sVOFF, 0x3ffff)
            dg.append(q.ins)
    if NODMA:
        dg = [[i for i in g if i.kind != 'vm_dma'] for g in dg]
    while len(dg) < 8:
        dg.append([])
    if os.environ.get("MAIN_IL", "1") == "0":
        for g in dg:
            p.ins += g
        dg = [[] for _ in range(8)]
    E = []
    VR = vfrag_reads(tm % 4) if do_sm else E
    QK = [qk_list(nxt, n) if do_qk else E for n in range(5)]
    SM = [sm_list(cur, n) if do_sm else E for n in range(5)]
    PV = [pv_list(n) if do_sm else E for n in range(5)]
    MX = [mx_list(nxt, n) if do_qk else E for n in range(5)]
    KR = kfrag_reads((tm + 2) % 4) if do_qk else E
    dg = [[g] if g else [] for g in dg]
    blocks = [
        (QK[0], VR[:8] + SM[0]),
        (QK[1], dg[0] + VR[8:] + SM[1]),
        (PV[0], dg[1] + SM[2]),
        (QK[2], dg[2] + SM[3]),
        (PV[1], dg[3] + SM[4]),
        (QK[3], dg[4] + MX[0]),
        (PV[2], dg[5] + MX[1]),
        (QK[4], dg[6] + MX[2]),
        (PV[3], dg[7] + KR),
        (PV[4], MX[3] + MX[4]),
    ]
    for mf, fl in blocks:
        p.ins += interleave(mf, fl)
    if do_qk:
        if first:
            for n in range(5):
                xlane_max(p, n)
            for n in range(5):
                for r in range(4):
                    p.v("v_sub_f32", vNM.sub(4 * n + r), 0, vMNEW.sub(n))
                for kt in range(2):
                    for r in range(4):
                        s = S_(nxt, kt, n).sub(r)
                        p.v("v_sub_f32", s, s, vMNEW.sub(n))
        else:
            p.v("v_max3_f32", vD, vMNEW.sub(0), vMNEW.sub(1), vMNEW.sub(2))
            p.v("v_max3_f32", vD, vD, vMNEW.sub(3), vMNEW.sub(4))
            p.add(Ins(f"v_cmp_gt_f32 {sCMP}, {vD}, {sTHR}", 'valu', [vD, sTHR], [sCMP]))
            p.nop(3)
            p.s("s_cmp_lg_u64", None, sCMP, 0)
            k = len(rescale_sites)
            rescale_sites.append((k, nxt))
            p.branch("s_cbranch_scc1", f"K1_RESC{k}")
            p.label(f"K1_RESC{k}_RET")


def rescale_block(p, k, buf):
    p.label(f"K1_RESC{k}")
    p.nop(15)
    for n in range(5):
        xlane_max(p, n)
    for n in range(5):
        m = vMNEW.sub(n)
        f = vTMP.sub(n)
        p.v("v_max_f32", m, 0, m)
        p.v("v_sub_f32", f, 0, m)
        p.v("v_exp_f32", f, f)
        for r in range(4):
            p.v("v_sub_f32", vNM.sub(4 * n + r), vNM.sub(4 * n + r), m)
            p.v("v_mul_f32", vL.sub(4 * n + r), vL.sub(4 * n + r), f)
        for kt in range(2):
            for r in range(4):
                s = S_(buf, kt, n).sub(r)
                p.v("v_sub_f32", s, s, m)
    k2 = 0
    for T in range(8):
        for n in range(5):
            t = vT.sub((k2 % 3) * 4, 4)
            k2 += 1
            for r in range(4):
                p.v("v_accvgpr_read_b32", t.sub(r), O_(T, n).sub(r))
            for r in range(4):
                p.v("v_mul_f32", t.sub(r), t.sub(r), vTMP.sub(n))
            for r in range(4):
                p.v("v_accvgpr_write_b32", O_(T, n).sub(r), t.sub(r))
    p.nop(3)
    p.branch("s_branch", f"K1_RESC{k}_RET")


def k1_epilogue(p):
    p.comment("---- epilogue")
    p.nop(15)
    for n in range(5):
        p.v("v_rcp_f32", vTMP.sub(n), vL.sub(4 * n))
    k = 0
    for n in range(5):
        for u in range(4):
            t = V((k % 4) * 12, 12)
            k += 1
            for e in range(2):
                for r in range(4):
                    p.v("v_accvgpr_read_b32", t.sub(4 * e + r), O_(2 * u + e, n).sub(r))
            for r in range(8):
                p.v("v_mul_f32", t.sub(r), t.sub(r), vTMP.sub(n))
            for r in range(4):
                p.v("v_cvt_pk_bf16_f32", t.sub(8 + r), t.sub(2 * r), t.sub(2 * r + 1))
            p.s("s_add_u32", sT1, sW5120, (u * 10 + n) * 1024)
            p.buf_store(t.sub(8, 4), vOo, sO, sT1, 0)


def gen_k1():
    p = Prog()
    p.label(K1)
    k1_setup(p)
    stamp_setup(p)
    p.label("K1_ROUND")
    stamp(p)
    k1_round_setup(p)
    k1_qproj(p)
    stamp(p)
    p.ins += kfrag_reads(0)
    iteration(p, 3, do_qk=True, do_sm=False, first=True)
    p.s("s_mov_b32", sCNT, 0)
    p.label("K1_LOOP")
    iteration(p, 0)

    def prev(p):
        p.s("s_cmp_lg_u32", None, sCNT, 7)
        p.branch("s_cbranch_scc1", "K1_NSV")
        for k in range(4):
            p.s("s_mov_b32", sV.sub(k), sVN.sub(k))
        p.s("s_mov_b32", sVOFF, sT0OFF)
        p.label("K1_NSV")
    iteration(p, 1, pre_v=prev)
    iteration(p, 2)
    p.s("s_cmp_eq_u32", None, sCNT, 7)
    p.branch("s_cbranch_scc1", "K1_LAST")

    def prek(p):
        p.s("s_cmp_lg_u32", None, sCNT, 6)
        p.branch("s_cbranch_scc1", "K1_NSK")
        for k in range(4):
            p.s("s_mov_b32", sK.sub(k), sKN.sub(k))
        p.s("s_mov_b32", sKOFF, sT0OFF)
        p.label("K1_NSK")
    iteration(p, 3, pre_k=prek)
    p.s("s_add_u32", sCNT, sCNT, 1)
    p.branch("s_branch", "K1_LOOP")
    p.label("K1_LAST")
    iteration(p, 3, do_qk=False, do_sm=True, kdma=False, vdma=False)
    stamp(p)
    k1_epilogue(p)
    stamp(p)
    p.s("s_mov_b32", sKN.sub(2), 0)
    p.s("s_mov_b32", sVN.sub(2), 0)
    p.s("s_add_u32", sRND, sRND, 1)
    p.s("s_cmp_lt_u32", None, sRND, 2)
    p.branch("s_cbranch_scc1", "K1_ROUND")
    p.label("K1_END")
    p.raw("s_endpgm", 'end')
    for k, buf in rescale_sites:
        rescale_block(p, k, buf)
    ins = insert_waits(p.ins)
    ins = fix_hazards(ins)
    return ins


def gen_k2():
    p = Prog()
    p.label(K2)
    sP = S(4, 2)
    sPb = S(6, 2)
    sOUT = S(8, 2)
    sWSP = S(10, 2)
    sWO = S(12, 4)
    sOO = S(16, 4)
    sOT = S(20, 4)
    sWV = S(24)
    sBUF = S(25)
    sKO = S(26)
    t1, t2, t3, t4 = S(27), S(28), S(29), S(30)
    sNT = S(31)
    sBLK = S(32)
    sBB = S(33)
    vLn = V(0)
    vBo = V(2, 3)
    vAd = V(12)
    vAa = V(14, 2)
    vAf = [V(16, 16), V(32, 16)]
    vBf = [V(48 + 40 * k, 40) for k in range(3)]
    vT_ = V(168, 32)
    vSt = V(200, 10)
    vRa = V(210)
    vWa_ = V(211)
    aC = A(0, 160)

    def C_(T, n):
        return aC.sub(T * 40 + n * 4, 4)

    p.s("s_cmp_ge_u32", None, sWG, 256)
    p.branch("s_cbranch_scc1", "K2_END")
    p.raw("s_load_dwordx2 s[4:5], s[0:1], 32", wr=['s4', 's5'])
    p.raw("s_load_dwordx2 s[6:7], s[0:1], 72", wr=['s6', 's7'])
    p.raw("s_load_dwordx2 s[8:9], s[0:1], 80", wr=['s8', 's9'])
    p.raw("s_load_dwordx2 s[10:11], s[0:1], 96", wr=['s10', 's11'])
    p.v("v_lshrrev_b32", vT_.sub(0), 6, V(0))
    p.v("v_and_b32", vLn, 63, V(0))
    p.nop(1)
    p.add(Ins(f"v_readfirstlane_b32 {sWV}, {vT_.sub(0)}", 'valu', [vT_.sub(0)], [sWV]))
    p.nop(3)
    p.s("s_and_b32", t1, sWG, 7)
    p.s("s_lshr_b32", t2, sWG, 3)
    p.s("s_and_b32", sNT, t2, 7)
    p.s("s_lshr_b32", t2, t2, 3)
    p.s("s_lshl_b32", t1, t1, 2)
    p.s("s_add_u32", t1, t1, t2)
    p.s("s_lshr_b32", sBLK, t1, 4)
    p.s("s_and_b32", sBB, t1, 15)
    p.s("s_lshl_b32", sBUF, sWV, 14)
    i_, g_, rp, cc, t5, t6 = (vT_.sub(k) for k in range(1, 7))
    p.v("v_and_b32", i_, 15, vLn)
    p.v("v_lshrrev_b32", g_, 4, vLn)
    p.v("v_bfe_u32", rp, vLn, 2, 2)
    p.v("v_and_b32", cc, 3, vLn)
    p.v("v_lshlrev_b32", t6, 4, vLn)
    for k in range(3):
        p.v("v_add_u32", vBo.sub(k), 4096 * k, t6)
    p.v("v_lshrrev_b32", t5, 3, vLn)
    p.v("v_and_b32", t6, 1, g_)
    p.v("v_lshlrev_b32", t6, 2, t6)
    p.v("v_and_b32", vAd, 7, vLn)
    p.v("v_xor_b32", vAd, vAd, t6)
    p.v("v_lshlrev_b32", vAd, 4, vAd)
    p.v("v_lshl_add_u32", vAd, t5, 10, vAd)
    for u in range(2):
        p.v("v_lshrrev_b32", t5, 1, rp)
        p.v("v_xor_b32", t5, u, t5)
        p.v("v_lshl_add_u32", t5, t5, 2, cc)
        p.v("v_lshlrev_b32", t5, 4, t5)
        p.v("v_lshl_add_u32", t6, g_, 3, rp)
        p.v("v_lshl_add_u32", t6, t6, 7, t5)
        p.v("v_add_u32", vAa.sub(u), sBUF, t6)
    p.v("v_lshlrev_b32", t6, 4, g_)
    for n in range(10):
        p.v("v_add_u32", t5, 16 * n, i_)
        p.v("v_lshl_add_u32", vSt.sub(n), t5, 11, t6)
    p.v("v_lshlrev_b32", vRa, 4, vLn)
    p.wait(lgkm=0)
    p.s("s_cmp_eq_u32", None, sBLK, 0)
    p.s("s_cselect_b32", sWO.sub(0), sP.sub(0), sPb.sub(0))
    p.s("s_cselect_b32", sWO.sub(1), sP.sub(1), sPb.sub(1))
    p.s("s_lshl_b32", t1, sNT, 7)
    p.s("s_add_u32", sWO.sub(0), sWO.sub(0), t1)
    p.s("s_addc_u32", sWO.sub(1), sWO.sub(1), 0)
    p.s("s_and_b32", sWO.sub(1), sWO.sub(1), 0xffff)
    p.s("s_sub_u32", sWO.sub(2), 4096 * 1024, t1)
    p.s("s_mov_b32", sWO.sub(3), 0x20000)
    p.s("s_lshl_b32", t2, sBLK, 4)
    p.s("s_add_u32", t2, t2, sBB)
    p.s("s_lshl_b32", t2, t2, 5)
    p.s("s_lshl_b32", t3, sWV, 3)
    p.s("s_add_u32", t2, t2, t3)
    p.s("s_mul_i32", t2, t2, 40960)
    p.s("s_add_u32", sOO.sub(0), sWSP.sub(0), t2)
    p.s("s_addc_u32", sOO.sub(1), sWSP.sub(1), 0)
    p.s("s_and_b32", sOO.sub(1), sOO.sub(1), 0xffff)
    p.s("s_mov_b32", sOO.sub(2), 8 * 40960)
    p.s("s_mov_b32", sOO.sub(3), 0x20000)
    p.s("s_mul_i32", t2, sBB, 160 * 2048)
    p.s("s_lshl_b32", t3, sBLK, 10)
    p.s("s_add_u32", t3, t3, t1)
    p.s("s_add_u32", t2, t2, t3)
    p.s("s_add_u32", sOT.sub(0), sOUT.sub(0), t2)
    p.s("s_addc_u32", sOT.sub(1), sOUT.sub(1), 0)
    p.s("s_and_b32", sOT.sub(1), sOT.sub(1), 0xffff)
    p.s("s_sub_u32", sOT.sub(2), 160 * 2048, t3)
    p.s("s_mov_b32", sOT.sub(3), 0x20000)
    p.s("s_lshl_b32", sKO, sWV, 20)

    def a_dma(ks):
        gs = []
        for j in range(4):
            q = sub_prog()
            q.s("s_add_u32", "m0", sBUF, (ks % 4) * 4096 + j * 1024)
            q.s("s_add_u32", t4, sKO, (32 * ks + 8 * j) * 1024)
            q.buf_dma(vAd, sWO, t4, 0, tag=('A', ks))
            gs.append(q.ins)
        return gs

    def b_load(ks):
        gs = []
        for n in range(10):
            q = sub_prog()
            q.s("s_mov_b32", t3, ks * 10240)
            q.buf_load(vBf[ks % 3].sub(4 * n, 4), vBo.sub(n // 4), sOO, t3, (n % 4) * 1024, tag=('B', ks))
            gs.append(q.ins)
        return gs

    def tr_list(ks):
        q = sub_prog()
        for T in range(4):
            u, e = T // 2, T % 2
            for e2 in range(2):
                q.ds_read("ds_read_b64_tr_b16", vAf[ks % 2].sub(T * 4 + 2 * e2, 2), vAa.sub(u),
                          (ks % 4) * 4096 + e2 * 512 + 8 * e)
        return q.ins

    for ks in range(4):
        for g in a_dma(ks):
            p.ins += g
    for ks in range(2):
        for g in b_load(ks):
            p.ins += g
    p.wait_tag(('A', 0))
    p.ins += tr_list(0)
    for ks in range(32):
        if ks + 1 < 32:
            p.wait_tag(('A', ks + 1))
        p.wait(lgkm=0)
        groups = []
        if ks + 4 < 32:
            groups += a_dma(ks + 4)
        if ks + 2 < 32:
            groups += b_load(ks + 2)
        m = sub_prog()
        for n in range(10):
            for T in range(4):
                m.mfma16(C_(T, n), vAf[ks % 2].sub(T * 4, 4), vBf[ks % 3].sub(4 * n, 4),
                         C_(T, n) if ks > 0 else 0)
        tr = tr_list(ks + 1) if ks + 1 < 32 else []
        nm = len(m.ins)
        pos = {}
        for k, g in enumerate(groups):
            pos.setdefault(1 + (k * (nm - 3)) // max(1, len(groups)), []).extend(g)
        for k, t in enumerate(tr):
            pos.setdefault(2 + k * 2, []).append(t)
        for k, mi in enumerate(m.ins):
            p.ins.append(mi)
            p.ins += pos.get(k, [])
    p.nop(15)
    p.wait(vm=0, lgkm=0)
    p.barrier()
    for dT in range(1, 4):
        slot = 3 - dT
        p.label(f"K2_W{dT}")
        p.s("s_add_u32", t1, sWV, dT)
        p.s("s_and_b32", t1, t1, 3)
        p.s("s_mul_i32", t2, t1, 30720)
        p.s("s_add_u32", t2, t2, slot * 10240)
        p.v("v_add_u32", vWa_, t2, vRa)
        for T in range(4):
            p.s("s_cmp_lg_u32", None, t1, T)
            p.branch("s_cbranch_scc1", f"K2_W{dT}_{T}")
            for n in range(10):
                p.ds_write("ds_write_b128", vWa_, C_(T, n), n * 1024)
            p.label(f"K2_W{dT}_{T}")
    p.wait(lgkm=0)
    p.barrier()
    p.s("s_mul_i32", t2, sWV, 30720)
    p.v("v_add_u32", vWa_, t2, vRa)
    for T in range(4):
        p.s("s_cmp_lg_u32", None, sWV, T)
        p.branch("s_cbranch_scc1", f"K2_R{T}")
        u, e = T // 2, T % 2
        for n in range(10):
            t = V(48 + (n % 2) * 20, 20)
            for sl in range(3):
                p.ds_read("ds_read_b128", t.sub(4 * sl, 4), vWa_, sl * 10240 + n * 1024)
            for r in range(4):
                p.v("v_accvgpr_read_b32", t.sub(12 + r), C_(T, n).sub(r))
            for sl in range(3):
                for r in range(4):
                    p.v("v_add_f32", t.sub(12 + r), t.sub(12 + r), t.sub(4 * sl + r))
            p.v("v_cvt_pk_bf16_f32", t.sub(16), t.sub(12), t.sub(13))
            p.v("v_cvt_pk_bf16_f32", t.sub(17), t.sub(14), t.sub(15))
            p.buf_store(t.sub(16, 2), vSt.sub(n), sOT, 0, u * 64 + e * 8)
        p.wait(vm=0, lgkm=0)
        p.label(f"K2_R{T}")
    p.label("K2_END")
    p.raw("s_endpgm", 'end')
    ins = insert_waits(p.ins)
    ins = fix_hazards(ins)
    return ins


HEADER = open(os.path.join(os.path.dirname(__file__), "header.txt")).read()


def descriptor(name, vg, sg, acc):
    return f""".amdhsa_kernel {name}
  .amdhsa_next_free_vgpr {vg}
  .amdhsa_next_free_sgpr {sg}
  .amdhsa_accum_offset {acc}
  .amdhsa_group_segment_fixed_size 0
  .amdhsa_kernarg_size 104
  .amdhsa_user_sgpr_count 2
  .amdhsa_user_sgpr_kernarg_segment_ptr 1
  .amdhsa_system_sgpr_workgroup_id_x 1
.end_amdhsa_kernel
"""


def main():
    k1 = gen_k1()
    k2 = gen_k2()
    out = HEADER
    out += f"; @launch kernel={K1} grid=(512,1,1) block=(128,1,1) lds={LDS_BYTES}\n"
    out += f"; @launch kernel={K2} grid=(256,1,1) block=(256,1,1) lds=122880\n"
    out += '.amdgcn_target "amdgcn-amd-amdhsa--gfx950"\n.text\n'
    out += f".globl {K1}\n.p2align 8\n.type {K1},@function\n"
    out += render(k1)
    out += f".globl {K2}\n.p2align 8\n.type {K2},@function\n"
    out += render(k2)
    out += '.section .rodata,"a"\n.p2align 6\n'
    out += descriptor(K1, 512, 96, 256)
    out += ".p2align 6\n"
    out += descriptor(K2, 512, 96, 256)
    dst = sys.argv[1] if len(sys.argv) > 1 else os.path.join(os.path.dirname(__file__), "..", "cdna_kernels", NAME + ".s")
    open(dst, "w").write(out)
    print("wrote", dst, len(out), "bytes;", len(k1), "+", len(k2), "instructions")


if __name__ == "__main__":
    main()
```

```python
def regs(prefix, start, n=1):
    return [f"{prefix}{start + k}" for k in range(n)]


def rtext(prefix, start, n=1):
    if n == 1:
        return f"{prefix}{start}"
    return f"{prefix}[{start}:{start + n - 1}]"


class Reg:
    def __init__(self, p, s, n=1):
        self.p, self.s, self.n = p, s, n

    def __str__(self):
        return rtext(self.p, self.s, self.n)

    def list(self):
        return regs(self.p, self.s, self.n)

    def sub(self, off, n=1):
        assert off + n <= self.n
        return Reg(self.p, self.s + off, n)


def V(s, n=1):
    return Reg('v', s, n)


def A(s, n=1):
    return Reg('a', s, n)


def S(s, n=1):
    return Reg('s', s, n)


def _rl(x):
    out = []
    for e in x:
        if isinstance(e, Reg):
            out += e.list()
        elif isinstance(e, str):
            out.append(e)
    return out


class Ins:
    __slots__ = ('text', 'kind', 'rd', 'wr', 'tag', 'srcc')

    def __init__(self, text, kind, rd=(), wr=(), tag=None, srcc=()):
        self.text = text
        self.kind = kind
        self.rd = set(_rl(rd))
        self.wr = set(_rl(wr))
        self.tag = tag
        self.srcc = _rl(srcc)

    def __repr__(self):
        return self.text


VALU_KINDS = ('valu', 'trans', 'perm')


class Prog:
    def __init__(self):
        self.ins = []

    def add(self, ins):
        self.ins.append(ins)
        return ins

    def raw(self, text, kind='salu', rd=(), wr=(), tag=None):
        return self.add(Ins(text, kind, rd, wr, tag))

    def label(self, name):
        self.add(Ins(f"{name}:", 'label'))

    def comment(self, t):
        self.add(Ins(f"; {t}", 'comment'))

    def s(self, op, dst, *src, wr_scc=True):
        rd = [x for x in src if isinstance(x, Reg) or (isinstance(x, str) and x in ('m0', 'vcc', 'exec', 'scc'))]
        wr = [dst] if dst is not None else []
        ops = ([str(dst)] if dst is not None else []) + [str(x) for x in src]
        return self.add(Ins(f"{op} {', '.join(ops)}", 'salu', rd, wr))

    def v(self, op, dst, *src, kind=None, extra_rd=(), extra_wr=()):
        def base(x):
            return x
        rd = []
        txt = []
        for x in src:
            if isinstance(x, tuple):
                rd.append(x[1])
                txt.append(f"{x[0]}{x[1]}")
            else:
                if isinstance(x, Reg) or (isinstance(x, str) and x in ('vcc', 'exec')):
                    rd.append(x)
                txt.append(str(x))
        if kind is None:
            kind = 'trans' if op.split('_')[1] in ('exp', 'rcp', 'log', 'rsq', 'sqrt') else 'valu'
        return self.add(Ins(f"{op} {dst}, {', '.join(txt)}", kind, rd + list(extra_rd), [dst] + list(extra_wr)))

    def mfma16(self, d, a, b, c):
        if isinstance(c, Reg):
            return self.add(Ins(f"v_mfma_f32_16x16x32_bf16 {d}, {a}, {b}, {c}", 'mfma', [a, b, c], [d], srcc=[c]))
        return self.add(Ins(f"v_mfma_f32_16x16x32_bf16 {d}, {a}, {b}, 0", 'mfma', [a, b], [d]))

    def ds_read(self, op, dst, addr, offset=0):
        assert 0 <= offset < 65536, offset
        return self.add(Ins(f"{op} {dst}, {addr} offset:{offset}", 'ds_rd', [addr], [dst]))

    def ds_write(self, op, addr, src, offset=0):
        assert 0 <= offset < 65536
        return self.add(Ins(f"{op} {addr}, {src} offset:{offset}", 'ds_wr', [addr, src], []))

    def buf_load(self, dst, voff, srd, soff, offset=0, tag=None, flags=''):
        assert 0 <= offset < 4096
        n = dst.n
        op = {1: 'buffer_load_dword', 2: 'buffer_load_dwordx2', 4: 'buffer_load_dwordx4'}[n]
        rd = [voff, srd] + ([soff] if isinstance(soff, Reg) else [])
        return self.add(Ins(f"{op} {dst}, {voff}, {srd}, {soff} offen offset:{offset}{flags}", 'vm_ld', rd, [dst], tag))

    def buf_dma(self, voff, srd, soff, offset=0, tag=None, flags=''):
        assert 0 <= offset < 4096
        rd = [voff, srd, 'm0'] + ([soff] if isinstance(soff, Reg) else [])
        return self.add(Ins(f"buffer_load_dwordx4 {voff}, {srd}, {soff} offen offset:{offset}{flags} lds", 'vm_dma', rd, [], tag))

    def buf_store(self, src, voff, srd, soff, offset=0, tag=None, flags=''):
        assert 0 <= offset < 4096
        n = src.n
        op = {1: 'buffer_store_dword', 2: 'buffer_store_dwordx2', 4: 'buffer_store_dwordx4'}[n]
        rd = [src, voff, srd] + ([soff] if isinstance(soff, Reg) else [])
        return self.add(Ins(f"{op} {src}, {voff}, {srd}, {soff} offen offset:{offset}{flags}", 'vm_st', rd, [], tag))

    def wait(self, vm=None, lgkm=None):
        t = []
        if vm is not None:
            t.append(f"vmcnt({vm})")
        if lgkm is not None:
            t.append(f"lgkmcnt({lgkm})")
        i = Ins("s_waitcnt " + " ".join(t), 'wait')
        i.tag = (vm, lgkm)
        return self.add(i)

    def wait_tag(self, tag):
        return self.add(Ins("", 'wait_tag', tag=tag))

    def barrier(self):
        return self.add(Ins("s_barrier", 'barrier'))

    def nop(self, n):
        return self.add(Ins(f"s_nop {n}", 'nop', tag=n))

    def branch(self, op, target):
        return self.add(Ins(f"{op} {target}", 'branch', rd=['scc'] if 'scc' in op else []))


def insert_waits(ins):
    out = []
    lg = []
    vm = []
    for i in ins:
        if i.kind == 'wait_tag':
            idx = None
            for k in range(len(vm) - 1, -1, -1):
                if vm[k][1] == i.tag:
                    idx = k
                    break
            if idx is not None:
                n = len(vm) - 1 - idx
                assert n <= 63
                w = Ins(f"s_waitcnt vmcnt({n})", 'wait')
                w.tag = (n, None)
                out.append(w)
                vm = vm[idx + 1:]
            continue
        if i.kind == 'wait':
            v, l = i.tag
            if v is not None:
                vm = vm[len(vm) - v:] if v < len(vm) else vm
                if v == 0:
                    vm = []
            if l is not None:
                lg = lg[len(lg) - l:] if l < len(lg) else lg
                if l == 0:
                    lg = []
            out.append(i)
            continue
        touched = i.rd | i.wr
        if touched:
            need_l = None
            for k in range(len(lg) - 1, -1, -1):
                if lg[k] & touched:
                    need_l = len(lg) - 1 - k
                    break
            need_v = None
            for k in range(len(vm) - 1, -1, -1):
                if vm[k][0] & touched:
                    need_v = len(vm) - 1 - k
                    break
            if need_l is not None or need_v is not None:
                t = []
                if need_v is not None:
                    assert need_v <= 63
                    t.append(f"vmcnt({need_v})")
                    vm = vm[len(vm) - need_v:] if need_v > 0 else []
                if need_l is not None:
                    need_l = min(need_l, 15)
                    t.append(f"lgkmcnt({need_l})")
                    lg = lg[len(lg) - need_l:] if need_l > 0 else []
                out.append(Ins("s_waitcnt " + " ".join(t), 'wait', tag=(need_v, need_l)))
        if i.kind == 'ds_rd':
            lg.append(set(i.wr))
        elif i.kind == 'ds_wr':
            lg.append(set())
        elif i.kind == 'vm_ld':
            vm.append((set(i.wr), i.tag))
        elif i.kind in ('vm_dma', 'vm_st'):
            vm.append((set(), i.tag))
        out.append(i)
    return out


def _states(i):
    if i.kind in ('label', 'comment', 'wait_tag'):
        return 0
    if i.kind == 'nop':
        return i.tag + 1
    return 1


def _required(p, c):
    need = 0
    pk, ck = p.kind, c.kind
    c_valu = ck in VALU_KINDS
    c_mem = ck in ('ds_rd', 'ds_wr', 'vm_ld', 'vm_dma', 'vm_st')
    if pk in VALU_KINDS:
        vw = {r for r in p.wr if r[0] in 'va' and r not in ('vcc',)}
        sw = {r for r in p.wr if r[0] == 's' or r == 'vcc'}
        if ck == 'mfma' and (vw & c.rd):
            need = max(need, 2)
        if ck == 'perm' and (vw & (c.rd | c.wr)):
            need = max(need, 2)
        if pk == 'trans' and c_valu and ck != 'trans' and (vw & c.rd):
            need = max(need, 1)
        if pk == 'trans' and (c_mem or ck == 'mfma') and (vw & c.rd):
            need = max(need, 2)
        if sw & c.rd:
            if c_valu:
                need = max(need, 2)
            if c_mem:
                need = max(need, 5)
            if ck in ('salu', 'branch'):
                need = max(need, 2)
        if c.text.startswith(('v_readfirstlane', 'v_readlane')) and (vw & c.rd):
            need = max(need, 1)
    if pk == 'mfma':
        d = p.wr
        if ck == 'mfma':
            cs = set(c.srcc)
            ab = c.rd - cs
            if d & ab:
                need = max(need, 8)
            if d & cs:
                if cs != d:
                    need = max(need, 6)
            if (d & c.wr) and not (d & cs):
                need = max(need, 8)
        elif c_valu or c_mem:
            if d & (c.rd | c.wr):
                need = max(need, 8)
    if pk == 'salu' and 'm0' in p.wr and ck == 'vm_dma':
        need = max(need, 1)
    if pk == 'vm_st' and c_valu:
        if p.rd & c.wr:
            need = max(need, 2)
    return need


def fix_hazards(ins, check_only=False):
    out = []
    viol = []
    WIN = 12
    for i in ins:
        if i.kind in ('label', 'comment'):
            out.append(i)
            continue
        dist = 0
        extra = 0
        for p in reversed(out):
            if dist >= WIN:
                break
            if p.kind in ('label', 'comment'):
                continue
            need = _required(p, i)
            if need > dist:
                extra = max(extra, need - dist)
            dist += _states(p)
        if extra > 0:
            if check_only:
                viol.append((i.text, extra))
            else:
                out.append(Ins(f"s_nop {extra - 1}", 'nop', tag=extra - 1))
        out.append(i)
    if check_only:
        return viol
    return out


def _flat(x):
    out = []
    for e in x:
        if isinstance(e, list):
            out += e
        else:
            out.append(e)
    return out


def interleave(mf, fill, lead=0):
    out = _flat(fill[:lead])
    fill = fill[lead:]
    n = len(mf)
    if n == 0:
        return out + _flat(fill)
    k = 0
    for idx, m in enumerate(mf):
        out.append(m)
        upto = (len(fill) * (idx + 1)) // n
        out += _flat(fill[k:upto])
        k = upto
    return out


def render(ins):
    lines = []
    for i in ins:
        if i.kind == 'label':
            lines.append(i.text)
        else:
            lines.append("    " + i.text)
    return "\n".join(lines) + "\n"
```

```python
import sys, os, math
sys.path.insert(0, os.path.dirname(__file__))
from asmlib import *
from asmlib import _flat

NAME = "concat_heads__mha_block_cached__gqa_block_cached__near_ridge"
K1 = NAME + "_kernel"
K2 = "oproj_kernel"

SCALE_LOG2E = (128 ** -0.5) * math.log2(math.e)
import struct


def fbits(x):
    return struct.unpack('<I', struct.pack('<f', x))[0]


THR_RAW = 8.0 / SCALE_LOG2E

NT = os.environ.get("KV_NT", "1") == "1"
KVFLAGS = " nt" if NT else ""

sKARG = S(0, 2)
sWG = S(2)
sPA = 4
sPB = 16
sWS = S(26, 2)
sW4096 = S(30)
sRND = S(31)
sB = S(32)
sH = S(33)
sPOFF = S(34)
sT0 = S(35)
sK = S(36, 4)
sV = S(40, 4)
sKN = S(44, 4)
sVN = S(48, 4)
sW = S(52, 4)
sX = S(56, 4)
sO = S(60, 4)
sKOFF = S(64)
sVOFF = S(65)
sCNT = S(66)
sC = S(67)
sT1 = S(68)
sT2 = S(69)
sCMP = S(70, 2)
sTHR = S(72)
sWOFF = S(73)
sT3 = S(74)
sT4 = S(75)
sT0OFF = S(83)
sW5120 = S(84)
sPIDX = S(85)
sW32 = S(86)
sXOFF = [S(88), S(89), S(90), S(91)]

vS = [V(0, 40), V(40, 40)]
vP = V(80, 20)
vKf = V(100, 32)
vVf = V(132, 32)
vNM = V(164, 20)
vL = V(184, 20)
vONE = V(204, 4)
vMNEW = V(208, 5)
vTMP = V(213, 5)
vKa = V(218, 4)
vVa = V(222, 4)
vWa = V(226, 4)
vKd = V(230, 4)
vVd = V(234)
vWd = V(235)
vXo = V(236, 5)
vOo = V(241)
vD = V(242)
vLANE = V(243)
vT = V(244, 8)
vTW = V(252)
vTX = V(253)
vDUM = V(255)
aO = A(0, 160)
aQ = A(160, 80)

LDS_K = 0
LDS_V = 32768
LDS_W = 49152
LDS_BYTES = 81920


def S_(buf, kt, n):
    return vS[buf].sub(kt * 20 + n * 4, 4)


def O_(T, n):
    return aO.sub(T * 20 + n * 4, 4)


def Q_(n, ds):
    return aQ.sub(n * 16 + ds * 4, 4)


def Kf_(kt, ds):
    return vKf.sub((kt * 4 + ds) * 4, 4)


def Vf_(T):
    return vVf.sub(T * 4, 4)


def sub_prog():
    return Prog()


def k1_setup(p):
    p.comment("---- setup")
    p.s("s_cmp_ge_u32", None, sWG, 512)
    p.branch("s_cbranch_scc1", "K1_END")
    p.raw(f"s_load_dwordx8 s[4:11], s[0:1], 0", wr=regs('s', 4, 8))
    p.raw(f"s_load_dwordx2 s[12:13], s[0:1], 32", wr=regs('s', 12, 2))
    p.raw(f"s_load_dwordx8 s[16:23], s[0:1], 40", wr=regs('s', 16, 8))
    p.raw(f"s_load_dwordx2 s[24:25], s[0:1], 72", wr=regs('s', 24, 2))
    p.raw(f"s_load_dwordx2 s[26:27], s[0:1], 96", wr=regs('s', 26, 2))
    p.v("v_and_b32", vLANE, 63, V(0))
    p.v("v_lshrrev_b32", vT.sub(0), 6, V(0))
    p.nop(1)
    p.add(Ins(f"v_readfirstlane_b32 {sT0}, {vT.sub(0)}", 'valu', [vT.sub(0)], [sT0]))
    p.nop(3)
    p.s("s_lshl_b32", sW4096, sT0, 12)
    p.s("s_mul_i32", sT4, sT0, 80)
    p.s("s_mul_i32", sW5120, sT0, 5120)
    p.s("s_and_b32", sT1, sWG, 7)
    p.s("s_lshr_b32", sT2, sWG, 3)
    p.s("s_lshl_b32", sT3, sT1, 2)
    p.s("s_add_u32", sT3, sT3, sT2)
    p.s("s_and_b32", sT3, sT3, 31)
    p.s("s_lshl_b32", sT3, sT3, 13)
    p.s("s_add_u32", sT0OFF, sT3, sW4096)
    p.s("s_lshr_b32", sB, sT2, 2)
    p.s("s_and_b32", sT2, sT2, 3)
    p.s("s_lshl_b32", sT1, sT1, 2)
    p.s("s_add_u32", sH, sT1, sT2)
    p.s("s_lshl_b32", sT1, sB, 5)
    p.s("s_add_u32", sPIDX, sT1, sH)
    p.s("s_lshl_b32", sPOFF, sPIDX, 18)
    p.s("s_mov_b32", sC, hex(fbits(SCALE_LOG2E)))
    p.s("s_mov_b32", sTHR, hex(fbits(8.0)))
    i_ = vT.sub(1)
    g_ = vT.sub(2)
    rp = vT.sub(3)
    cc = vT.sub(4)
    t5 = vT.sub(5)
    t6 = vT.sub(6)
    p.v("v_and_b32", i_, 15, vLANE)
    p.v("v_lshrrev_b32", g_, 4, vLANE)
    p.v("v_bfe_u32", rp, vLANE, 2, 2)
    p.v("v_and_b32", cc, 3, vLANE)
    for k in range(4):
        p.v("v_mov_b32", vONE.sub(k), "0x3f803f80")
    for ds in range(4):
        p.v("v_add_u32", t5, 4 * ds, g_)
        p.v("v_xor_b32", t5, t5, i_)
        p.v("v_lshlrev_b32", t5, 4, t5)
        p.v("v_lshl_add_u32", vKa.sub(ds), i_, 8, t5)
    for u in range(4):
        p.v("v_xor_b32", t5, u, rp)
        p.v("v_lshl_add_u32", t5, t5, 2, cc)
        p.v("v_lshlrev_b32", t5, 4, t5)
        p.v("v_lshl_add_u32", t6, g_, 2, rp)
        p.v("v_lshl_add_u32", vVa.sub(u), t6, 8, t5)
        p.v("v_lshl_add_u32", t6, g_, 3, rp)
        p.v("v_lshl_add_u32", t6, t6, 8, t5)
        p.v("v_add_u32", vWa.sub(u), LDS_W, t6)
    for j in range(4):
        p.v("v_add_u32", t5, 4 * j, g_)
        p.v("v_xor_b32", t5, t5, i_)
        p.v("v_lshlrev_b32", t5, 4, t5)
        p.v("v_lshl_add_u32", vKd.sub(j), g_, 8, t5)
    p.v("v_lshlrev_b32", t5, 2, g_)
    p.v("v_xor_b32", t5, t5, i_)
    p.v("v_lshlrev_b32", t5, 4, t5)
    p.v("v_lshl_add_u32", vVd, g_, 8, t5)
    p.v("v_lshl_add_u32", vWd, g_, 13, t5)
    p.v("v_lshlrev_b32", vOo, 4, vLANE)
    p.s("s_mul_i32", sT1, sT0, 5 * 16384)
    for n in range(5):
        p.v("v_add_u32", t5, sT1, vOo)
        p.v("v_add_u32", vXo.sub(n), n * 16384, t5)
    p.v("v_lshlrev_b32", vTX, 7, vLANE)
    p.v("v_lshrrev_b32", t5, 1, vLANE)
    p.v("v_and_b32", t6, 1, vLANE)
    p.v("v_lshlrev_b32", t6, 7, t6)
    p.v("v_lshl_add_u32", vTW, t5, 13, t6)
    p.wait(lgkm=0)
    for srd, pbase in ((sK, sPA + 2), (sV, sPA + 4), (sKN, sPB + 2), (sVN, sPB + 4)):
        p.s("s_add_u32", srd.sub(0), S(pbase), sPOFF)
        p.s("s_addc_u32", srd.sub(1), S(pbase + 1), 0)
        p.s("s_and_b32", srd.sub(1), srd.sub(1), 0xffff)
        p.s("s_mov_b32", srd.sub(2), 262144)
        p.s("s_mov_b32", srd.sub(3), 0x20000)
    p.s("s_mov_b32", sRND, 0)
    def kd(slot, tile):
        p.s("s_add_u32", "m0", sW4096, LDS_K + slot * 8192)
        p.s("s_add_u32", sKOFF, sT0OFF, tile * 8192)
        p.s("s_and_b32", sKOFF, sKOFF, 0x3ffff)
        for j in range(4):
            p.buf_dma(vKd.sub(j), sK, sKOFF, j * 1024, flags=KVFLAGS)
    def vd(slot, tile):
        p.s("s_add_u32", "m0", sW4096, LDS_V + slot * 8192)
        p.s("s_add_u32", sVOFF, sT0OFF, tile * 8192)
        p.s("s_and_b32", sVOFF, sVOFF, 0x3ffff)
        for j in range(4):
            p.buf_dma(vVd, sV, sVOFF, j * 1024, flags=KVFLAGS)
    k1_xw_setup(p, sRND)
    k1_touch(p)
    kd(0, 0); kd(1, 1); kd(2, 2); vd(0, 0); kd(3, 3); vd(1, 1)


def k1_xw_setup(p, rnd_reg):
    p.s("s_lshl_b32", sT1, rnd_reg, 4)
    p.s("s_add_u32", sT1, sT1, sB)
    p.s("s_mul_i32", sT1, sT1, 163840)
    p.s("s_add_u32", sT1, sT1, WS_XF)
    p.s("s_add_u32", sX.sub(0), sWS.sub(0), sT1)
    p.s("s_addc_u32", sX.sub(1), sWS.sub(1), 0)
    p.s("s_and_b32", sX.sub(1), sX.sub(1), 0xffff)
    p.s("s_mov_b32", sX.sub(2), 163840)
    p.s("s_mov_b32", sX.sub(3), 0x20000)
    p.s("s_lshl_b32", sT1, rnd_reg, 5)
    p.s("s_add_u32", sT1, sT1, sH)
    p.s("s_lshl_b32", sT1, sT1, 17)
    p.s("s_add_u32", sT1, sT1, WS_WQ)
    p.s("s_add_u32", sW.sub(0), sWS.sub(0), sT1)
    p.s("s_addc_u32", sW.sub(1), sWS.sub(1), 0)
    p.s("s_and_b32", sW.sub(1), sW.sub(1), 0xffff)
    p.s("s_mov_b32", sW.sub(2), 131072)
    p.s("s_mov_b32", sW.sub(3), 0x20000)


def k1_touch(p):
    if os.environ.get("TOUCH", "0") == "0":
        return
    p.s("s_lshl_b32", sT1, sW4096, 9)
    for k in range(8):
        p.s("s_add_u32", sT2, sT1, 32 * k * 8192)
        p.buf_load(vDUM, vTW, sW, sT2, 0)
    p.s("s_lshl_b32", sT1, sT4, 10)
    for k in range(10):
        p.s("s_add_u32", sT2, sT1, k * 8192)
        p.buf_load(vDUM, vTX, sX, sT2, 0)


def k1_round_setup(p):
    p.comment("---- round setup")
    p.s("s_lshl_b32", sT2, sRND, 9)
    p.s("s_add_u32", sT2, sT2, sPIDX)
    p.s("s_mul_i32", sT2, sT2, 40960)
    p.s("s_add_u32", sO.sub(0), sWS.sub(0), sT2)
    p.s("s_addc_u32", sO.sub(1), sWS.sub(1), 0)
    p.s("s_and_b32", sO.sub(1), sO.sub(1), 0xffff)
    p.s("s_mov_b32", sO.sub(2), 40960)
    p.s("s_mov_b32", sO.sub(3), 0x20000)
    p.s("s_add_u32", sKOFF, sT0OFF, 4 * 8192)
    p.s("s_and_b32", sKOFF, sKOFF, 0x3ffff)
    p.s("s_add_u32", sVOFF, sT0OFF, 2 * 8192)
    p.s("s_and_b32", sVOFF, sVOFF, 0x3ffff)


def k1_qproj(p):
    p.comment("---- Q projection")
    Xs = [Reg('v', 0 + 20 * k, 20) for k in range(4)]
    Wf = [vVf, vKf]

    def w_dma(cs):
        q = sub_prog()
        buf = cs % 4
        q.s("s_add_u32", "m0", sW4096, LDS_W + buf * 8192)
        q.s("s_add_u32", sWOFF, sW4096, cs * 8192)
        for j in range(4):
            q.buf_dma(vOo, sW, sWOFF, j * 1024, tag=('W', cs))
        if os.environ.get("QNOW", "0") == "1":
            return []
        return [q.ins[0:3], q.ins[3:4], q.ins[4:5], q.ins[5:6]]

    def x_load(cs):
        q = sub_prog()
        for n in range(5):
            q.buf_load(Xs[cs % 4].sub(4 * n, 4), vXo.sub(n), sX, sXOFF[cs // 4], (cs % 4) * 1024, tag=('X', cs))
        if os.environ.get("QNOX", "0") == "1":
            return []
        return [[i] for i in q.ins]

    def tr_list(cs):
        q = sub_prog()
        buf = cs % 4
        for T in range(8):
            u, e = T // 2, T % 2
            for e2 in range(2):
                q.ds_read("ds_read_b64_tr_b16", Wf[cs % 2].sub(T * 4 + 2 * e2, 2), vWa.sub(u),
                          buf * 8192 + e2 * 1024 + 8 * e)
        return q.ins

    for k in range(4):
        p.s("s_mov_b32", sXOFF[k], k * 4096)
    p.wait(lgkm=0)
    p.barrier()
    for cs in range(4):
        for grp in w_dma(cs):
            p.ins += grp
    for cs in range(3):
        for grp in x_load(cs):
            p.ins += grp
    p.wait_tag(('W', 0))
    p.wait(lgkm=0)
    p.barrier()
    p.ins += tr_list(0)
    for cs in range(16):
        if cs + 1 < 16:
            p.wait_tag(('W', cs + 1))
        p.wait(lgkm=0)
        p.barrier()
        groups = []
        if cs + 4 < 16:
            groups += w_dma(cs + 4)
        if cs + 3 < 16:
            groups += x_load(cs + 3)
        m = sub_prog()
        for n in range(5):
            for T in range(8):
                m.mfma16(O_(T, n), Wf[cs % 2].sub(T * 4, 4), Xs[cs % 4].sub(4 * n, 4),
                         O_(T, n) if cs > 0 else 0)
        tr = tr_list(cs + 1) if cs + 1 < 16 else []
        seq = []
        nm = len(m.ins)
        pos = {}
        if os.environ.get("QP_IL", "1") == "0":
            for g in groups:
                p.ins += g
            groups = []
        for k, g in enumerate(groups):
            pos.setdefault(2 + (k * (nm - 4)) // max(1, len(groups)), []).extend(g)
        for k, t in enumerate(tr):
            pos.setdefault(1 + k * 2, []).append(t)
        for k, mi in enumerate(m.ins):
            seq.append(mi)
            seq += pos.get(k, [])
        p.ins += seq
    k = 0
    for n in range(5):
        for ds in range(4):
            for half in range(2):
                src = O_(2 * ds + half, n)
                t = V((k % 4) * 8, 6)
                k += 1
                for r in range(4):
                    p.v("v_accvgpr_read_b32", t.sub(r), src.sub(r))
                for r in range(4):
                    p.v("v_mul_f32", t.sub(r), sC, t.sub(r))
                p.v("v_cvt_pk_bf16_f32", t.sub(4), t.sub(0), t.sub(1))
                p.v("v_cvt_pk_bf16_f32", t.sub(5), t.sub(2), t.sub(3))
                p.v("v_accvgpr_write_b32", Q_(n, ds).sub(2 * half), t.sub(4))
                p.v("v_accvgpr_write_b32", Q_(n, ds).sub(2 * half + 1), t.sub(5))
    for k in range(160):
        p.v("v_accvgpr_write_b32", aO.sub(k), 0)
    for k in range(20):
        p.v("v_mov_b32", vL.sub(k), 0)
        p.v("v_mov_b32", vNM.sub(k), 0)


def kfrag_reads(slot):
    q = sub_prog()
    for kt in range(2):
        for ds in range(4):
            q.ds_read("ds_read_b128", Kf_(kt, ds), vKa.sub(ds), LDS_K + slot * 8192 + kt * 4096)
    return q.ins


def vfrag_reads(slot):
    q = sub_prog()
    for T in range(8):
        u, e = T // 2, T % 2
        for e2 in range(2):
            q.ds_read("ds_read_b64_tr_b16", Vf_(T).sub(2 * e2, 2), vVa.sub(u),
                      LDS_V + slot * 8192 + e2 * 4096 + 8 * e)
    return q.ins


def qk_list(buf, n):
    q = sub_prog()
    for ds in range(4):
        for kt in range(2):
            q.mfma16(S_(buf, kt, n), Kf_(kt, ds), Q_(n, ds), S_(buf, kt, n) if ds > 0 else vNM.sub(4 * n, 4))
    return q.ins


def sm_list(buf, n):
    q = sub_prog()
    for kt in range(2):
        for r in range(4):
            s = S_(buf, kt, n).sub(r)
            q.v("v_exp_f32", s, s)
    for kt in range(2):
        for rr in range(2):
            q.v("v_cvt_pk_bf16_f32", vP.sub(n * 4 + 2 * kt + rr), S_(buf, kt, n).sub(2 * rr), S_(buf, kt, n).sub(2 * rr + 1))
    return q.ins


def pv_list(n):
    q = sub_prog()
    for T in range(8):
        q.mfma16(O_(T, n), Vf_(T), vP.sub(n * 4, 4), O_(T, n))
    q.mfma16(vL.sub(4 * n, 4), vONE, vP.sub(n * 4, 4), vL.sub(4 * n, 4))
    return q.ins


def mx_list(buf, n):
    q = sub_prog()
    m = vMNEW.sub(n)
    a, b = S_(buf, 0, n), S_(buf, 1, n)
    q.v("v_max3_f32", m, a.sub(0), a.sub(1), a.sub(2))
    q.v("v_max3_f32", m, m, a.sub(3), b.sub(0))
    q.v("v_max3_f32", m, m, b.sub(1), b.sub(2))
    q.v("v_max_f32", m, m, b.sub(3))
    return q.ins


def xlane_max(p, n):
    m = vMNEW.sub(n)
    t = vTMP.sub(n)
    p.v("v_mov_b32", t, m)
    p.add(Ins(f"v_permlane32_swap_b32 {t}, {m}", 'perm', [t, m], [t, m]))
    p.v("v_max_f32", m, m, t)
    p.v("v_mov_b32", t, m)
    p.add(Ins(f"v_permlane16_swap_b32 {t}, {m}", 'perm', [t, m], [t, m]))
    p.v("v_max_f32", m, m, t)


rescale_sites = []
INSTR = os.environ.get("INSTR", "0") == "1"
sST = S(76, 4)
sTM = S(80, 2)
sSTI = S(82)


def stamp_setup(p):
    if not INSTR:
        return
    p.s("s_lshl_b32", sT1, sWG, 9)
    p.s("s_add_u32", sT1, sT1, 1 << 27)
    p.s("s_add_u32", sST.sub(0), sWS.sub(0), sT1)
    p.s("s_addc_u32", sST.sub(1), sWS.sub(1), 0)
    p.s("s_and_b32", sST.sub(1), sST.sub(1), 0xffff)
    p.s("s_mov_b32", sST.sub(2), 512)
    p.s("s_mov_b32", sST.sub(3), 0x20000)
    p.s("s_lshr_b32", sSTI, sW4096, 4)


def stamp(p):
    if not INSTR:
        return
    p.raw(f"s_memtime {sTM}", wr=[sTM])
    p.wait(lgkm=0)
    p.v("v_mov_b32", vT.sub(6), sTM.sub(0))
    p.v("v_mov_b32", vT.sub(7), sTM.sub(1))
    p.v("v_mov_b32", vT.sub(5), sSTI)
    p.buf_store(vT.sub(6, 2), vT.sub(5), sST, 0, 0)
    p.s("s_add_u32", sSTI, sSTI, 8)


NODMA = os.environ.get("NODMA", "0") == "1"


def iteration(p, tm, do_qk=True, do_sm=True, kdma=True, vdma=True, first=False, pre_k=None, pre_v=None, hook=None):
    cur = tm % 2
    nxt = 1 - cur
    p.wait(vm=int(os.environ.get("WAITVM", "16")), lgkm=0)
    p.barrier()
    if hook:
        hook(p)
    dg = []
    if kdma:
        q = sub_prog()
        if pre_k:
            pre_k(q)
        q.s("s_add_u32", "m0", sW4096, LDS_K + ((tm + 1) % 4) * 8192)
        q.nop(0)
        q.buf_dma(vKd.sub(0), sK, sKOFF, 0, flags=KVFLAGS)
        dg.append(q.ins)
        for j in range(1, 4):
            q = sub_prog()
            q.buf_dma(vKd.sub(j), sK, sKOFF, j * 1024, flags=KVFLAGS)
            if j == 3:
                q.s("s_add_u32", sKOFF, sKOFF, 8192)
                q.s("s_and_b32", sKOFF, sKOFF, 0x3ffff)
            dg.append(q.ins)
    if vdma:
        q = sub_prog()
        if pre_v:
            pre_v(q)
        q.s("s_add_u32", "m0", sW4096, LDS_V + ((tm + 3) % 4) * 8192)
        q.nop(0)
        q.buf_dma(vVd, sV, sVOFF, 0, flags=KVFLAGS)
        dg.append(q.ins)
        for j in range(1, 4):
            q = sub_prog()
            q.buf_dma(vVd, sV, sVOFF, j * 1024, flags=KVFLAGS)
            if j == 3:
                q.s("s_add_u32", sVOFF, sVOFF, 8192)
                q.s("s_and_b32", sVOFF, sVOFF, 0x3ffff)
            dg.append(q.ins)
    if NODMA:
        dg = [[i for i in g if i.kind != 'vm_dma'] for g in dg]
    while len(dg) < 8:
        dg.append([])
    if os.environ.get("MAIN_IL", "1") == "0":
        for g in dg:
            p.ins += g
        dg = [[] for _ in range(8)]
    E = []
    VR = vfrag_reads(tm % 4) if do_sm else E
    QK = [qk_list(nxt, n) if do_qk else E for n in range(5)]
    SM = [sm_list(cur, n) if do_sm else E for n in range(5)]
    PV = [pv_list(n) if do_sm else E for n in range(5)]
    MX = [mx_list(nxt, n) if do_qk else E for n in range(5)]
    KR = kfrag_reads((tm + 2) % 4) if do_qk else E
    dg = [[g] if g else [] for g in dg]
    blocks = [
        (QK[0], VR[:8] + SM[0]),
        (QK[1], dg[0] + VR[8:] + SM[1]),
        (PV[0], dg[1] + SM[2]),
        (QK[2], dg[2] + SM[3]),
        (PV[1], dg[3] + SM[4]),
        (QK[3], dg[4] + MX[0]),
        (PV[2], dg[5] + MX[1]),
        (QK[4], dg[6] + MX[2]),
        (PV[3], dg[7] + KR),
        (PV[4], MX[3] + MX[4]),
    ]
    if os.environ.get("NOCOMP", "0") == "1":
        for g in dg:
            p.ins += _flat(g)
        return
    for mf, fl in blocks:
        p.ins += interleave(mf, fl)
    if do_qk:
        if first:
            for n in range(5):
                xlane_max(p, n)
            for n in range(5):
                for r in range(4):
                    p.v("v_sub_f32", vNM.sub(4 * n + r), 0, vMNEW.sub(n))
                for kt in range(2):
                    for r in range(4):
                        s = S_(nxt, kt, n).sub(r)
                        p.v("v_sub_f32", s, s, vMNEW.sub(n))
        else:
            p.v("v_max3_f32", vD, vMNEW.sub(0), vMNEW.sub(1), vMNEW.sub(2))
            p.v("v_max3_f32", vD, vD, vMNEW.sub(3), vMNEW.sub(4))
            p.add(Ins(f"v_cmp_gt_f32 {sCMP}, {vD}, {sTHR}", 'valu', [vD, sTHR], [sCMP]))
            p.nop(3)
            p.s("s_cmp_lg_u64", None, sCMP, 0)
            k = len(rescale_sites)
            rescale_sites.append((k, nxt))
            p.branch("s_cbranch_scc1", f"K1_RESC{k}")
            p.label(f"K1_RESC{k}_RET")


def rescale_block(p, k, buf):
    p.label(f"K1_RESC{k}")
    p.nop(15)
    for n in range(5):
        xlane_max(p, n)
    for n in range(5):
        m = vMNEW.sub(n)
        f = vTMP.sub(n)
        p.v("v_max_f32", m, 0, m)
        p.v("v_sub_f32", f, 0, m)
        p.v("v_exp_f32", f, f)
        for r in range(4):
            p.v("v_sub_f32", vNM.sub(4 * n + r), vNM.sub(4 * n + r), m)
            p.v("v_mul_f32", vL.sub(4 * n + r), vL.sub(4 * n + r), f)
        for kt in range(2):
            for r in range(4):
                s = S_(buf, kt, n).sub(r)
                p.v("v_sub_f32", s, s, m)
    k2 = 0
    for T in range(8):
        for n in range(5):
            t = vP.sub((k2 % 5) * 4, 4)
            k2 += 1
            for r in range(4):
                p.v("v_accvgpr_read_b32", t.sub(r), O_(T, n).sub(r))
            for r in range(4):
                p.v("v_mul_f32", t.sub(r), t.sub(r), vTMP.sub(n))
            for r in range(4):
                p.v("v_accvgpr_write_b32", O_(T, n).sub(r), t.sub(r))
    p.nop(3)
    p.branch("s_branch", f"K1_RESC{k}_RET")


def k1_epilogue(p):
    p.comment("---- epilogue")
    p.nop(15)
    for n in range(5):
        p.v("v_rcp_f32", vTMP.sub(n), vL.sub(4 * n))
    k = 0
    for n in range(5):
        for u in range(4):
            t = V((k % 4) * 12, 12)
            k += 1
            for e in range(2):
                for r in range(4):
                    p.v("v_accvgpr_read_b32", t.sub(4 * e + r), O_(2 * u + e, n).sub(r))
            for r in range(8):
                p.v("v_mul_f32", t.sub(r), t.sub(r), vTMP.sub(n))
            for r in range(4):
                p.v("v_cvt_pk_bf16_f32", t.sub(8 + r), t.sub(2 * r), t.sub(2 * r + 1))
            p.s("s_add_u32", sT1, sW5120, (u * 10 + n) * 1024)
            p.buf_store(t.sub(8, 4), vOo, sO, sT1, 0)


def gen_k1():
    p = Prog()
    p.label(K1)
    k1_setup(p)
    stamp_setup(p)
    p.label("K1_ROUND")
    stamp(p)
    k1_round_setup(p)
    if os.environ.get("QSKIP", "0") != "1":
        k1_qproj(p)
    stamp(p)
    p.ins += kfrag_reads(0)
    iteration(p, 3, do_qk=True, do_sm=False, first=True)
    p.s("s_mov_b32", sCNT, 0)
    p.label("K1_LOOP")
    iteration(p, 0)

    def prev(p):
        p.s("s_cmp_lg_u32", None, sCNT, 7)
        p.branch("s_cbranch_scc1", "K1_NSV")
        for k in range(4):
            p.s("s_mov_b32", sV.sub(k), sVN.sub(k))
        p.s("s_mov_b32", sVOFF, sT0OFF)
        p.label("K1_NSV")
    iteration(p, 1, pre_v=prev)
    iteration(p, 2)
    p.s("s_cmp_eq_u32", None, sCNT, 7)
    p.branch("s_cbranch_scc1", "K1_LAST")

    def prek(p):
        p.s("s_cmp_lg_u32", None, sCNT, 6)
        p.branch("s_cbranch_scc1", "K1_NSK")
        for k in range(4):
            p.s("s_mov_b32", sK.sub(k), sKN.sub(k))
        p.s("s_mov_b32", sKOFF, sT0OFF)
        p.label("K1_NSK")
    iteration(p, 3, pre_k=prek)
    p.s("s_add_u32", sCNT, sCNT, 1)
    p.branch("s_branch", "K1_LOOP")
    p.label("K1_LAST")
    def hk(p):
        p.s("s_mov_b32", sT3, 1)
        k1_xw_setup(p, sT3)
        k1_touch(p)
    iteration(p, 3, do_qk=False, do_sm=True, kdma=False, vdma=False, hook=hk)
    stamp(p)
    k1_epilogue(p)
    stamp(p)
    p.s("s_mov_b32", sKN.sub(2), 0)
    p.s("s_mov_b32", sVN.sub(2), 0)
    p.s("s_add_u32", sRND, sRND, 1)
    p.s("s_cmp_lt_u32", None, sRND, 2)
    p.branch("s_cbranch_scc1", "K1_ROUND")
    p.label("K1_END")
    p.raw("s_endpgm", 'end')
    for k, buf in rescale_sites:
        rescale_block(p, k, buf)
    ins = insert_waits(p.ins)
    ins = fix_hazards(ins)
    return ins


def gen_k2():
    p = Prog()
    p.label(K2)
    sP = S(4, 2)
    sPb = S(6, 2)
    sOUT = S(8, 2)
    sWSP = S(10, 2)
    sWO = S(12, 4)
    sOO = S(16, 4)
    sOT = S(20, 4)
    sWV = S(24)
    sBUF = S(25)
    sKO = S(26)
    t1, t2, t3, t4 = S(27), S(28), S(29), S(30)
    sNT = S(31)
    sBLK = S(32)
    sBB = S(33)
    vLn = V(0)
    vBo = V(2, 3)
    vAd = V(12)
    vAa = V(14, 2)
    vAf = [V(16, 16), V(32, 16)]
    NB = int(os.environ.get("K2_NB", "5"))
    vBf = [V(48 + 40 * k, 40) for k in range(NB)]
    vT_ = V(208, 12)
    vSt = V(100, 10)
    vSt0 = V(248)
    vRa = V(249)
    vWa_ = V(250)
    vTch = V(252, 2)
    aC = A(0, 160)

    def C_(T, n):
        return aC.sub(T * 40 + n * 4, 4)

    p.s("s_cmp_ge_u32", None, sWG, 256)
    p.branch("s_cbranch_scc1", "K2_END")
    p.raw("s_load_dwordx2 s[4:5], s[0:1], 32", wr=['s4', 's5'])
    p.raw("s_load_dwordx2 s[6:7], s[0:1], 72", wr=['s6', 's7'])
    p.raw("s_load_dwordx2 s[8:9], s[0:1], 80", wr=['s8', 's9'])
    p.raw("s_load_dwordx2 s[10:11], s[0:1], 96", wr=['s10', 's11'])
    p.v("v_lshrrev_b32", vT_.sub(0), 6, V(0))
    p.v("v_and_b32", vLn, 63, V(0))
    p.nop(1)
    p.add(Ins(f"v_readfirstlane_b32 {sWV}, {vT_.sub(0)}", 'valu', [vT_.sub(0)], [sWV]))
    p.nop(3)
    p.s("s_and_b32", t1, sWG, 7)
    p.s("s_lshr_b32", t2, sWG, 3)
    p.s("s_and_b32", sNT, t2, 7)
    p.s("s_lshr_b32", t2, t2, 3)
    p.s("s_lshl_b32", t1, t1, 2)
    p.s("s_add_u32", t1, t1, t2)
    p.s("s_lshr_b32", sBLK, t1, 4)
    p.s("s_and_b32", sBB, t1, 15)
    p.s("s_lshl_b32", sBUF, sWV, 14)
    i_, g_, rp, cc, t5, t6 = (vT_.sub(k) for k in range(1, 7))
    p.v("v_and_b32", i_, 15, vLn)
    p.v("v_lshrrev_b32", g_, 4, vLn)
    p.v("v_bfe_u32", rp, vLn, 2, 2)
    p.v("v_and_b32", cc, 3, vLn)
    p.v("v_lshlrev_b32", t6, 4, vLn)
    for k in range(3):
        p.v("v_add_u32", vBo.sub(k), 4096 * k, t6)
    p.v("v_lshlrev_b32", vAd, 4, vLn)
    for u in range(2):
        p.v("v_lshrrev_b32", t5, 1, rp)
        p.v("v_xor_b32", t5, u, t5)
        p.v("v_lshl_add_u32", t5, t5, 2, cc)
        p.v("v_lshlrev_b32", t5, 4, t5)
        p.v("v_lshl_add_u32", t6, g_, 3, rp)
        p.v("v_lshl_add_u32", t6, t6, 7, t5)
        p.v("v_add_u32", vAa.sub(u), sBUF, t6)
    p.v("v_lshlrev_b32", t6, 4, g_)
    p.v("v_lshl_add_u32", vSt0, i_, 11, t6)
    p.v("v_lshlrev_b32", vRa, 4, vLn)
    p.wait(lgkm=0)
    p.s("s_lshl_b32", t1, sNT, 7)
    p.s("s_lshl_b32", t2, sBLK, 3)
    p.s("s_add_u32", t2, t2, sNT)
    p.s("s_lshl_b32", t2, t2, 7)
    p.s("s_lshl_b32", t3, sWV, 5)
    p.s("s_add_u32", t2, t2, t3)
    p.s("s_lshl_b32", t2, t2, 12)
    p.s("s_add_u32", t2, t2, WS_WO)
    p.s("s_add_u32", sWO.sub(0), sWSP.sub(0), t2)
    p.s("s_addc_u32", sWO.sub(1), sWSP.sub(1), 0)
    p.s("s_and_b32", sWO.sub(1), sWO.sub(1), 0xffff)
    p.s("s_mov_b32", sWO.sub(2), 32 * 4096)
    p.s("s_mov_b32", sWO.sub(3), 0x20000)
    p.s("s_lshl_b32", t2, sBLK, 4)
    p.s("s_add_u32", t2, t2, sBB)
    p.s("s_lshl_b32", t2, t2, 5)
    p.s("s_lshl_b32", t3, sWV, 3)
    p.s("s_add_u32", t2, t2, t3)
    p.s("s_mul_i32", t2, t2, 40960)
    p.s("s_add_u32", sOO.sub(0), sWSP.sub(0), t2)
    p.s("s_addc_u32", sOO.sub(1), sWSP.sub(1), 0)
    p.s("s_and_b32", sOO.sub(1), sOO.sub(1), 0xffff)
    p.s("s_mov_b32", sOO.sub(2), 8 * 40960)
    p.s("s_mov_b32", sOO.sub(3), 0x20000)
    p.s("s_mul_i32", t2, sBB, 160 * 2048)
    p.s("s_lshl_b32", t3, sBLK, 10)
    p.s("s_add_u32", t3, t3, t1)
    p.s("s_add_u32", t2, t2, t3)
    p.s("s_add_u32", sOT.sub(0), sOUT.sub(0), t2)
    p.s("s_addc_u32", sOT.sub(1), sOUT.sub(1), 0)
    p.s("s_and_b32", sOT.sub(1), sOT.sub(1), 0xffff)
    p.s("s_sub_u32", sOT.sub(2), 160 * 2048, t3)
    p.s("s_mov_b32", sOT.sub(3), 0x20000)
    p.s("s_lshl_b32", sKO, sWV, 20)

    def a_dma(ks):
        gs = []
        for j in range(4):
            q = sub_prog()
            if j == 0:
                q.s("s_add_u32", "m0", sBUF, (ks % 4) * 4096)
                q.s("s_mov_b32", t4, ks * 4096)
            q.buf_dma(vAd, sWO, t4, j * 1024, tag=('A', ks))
            gs.append(q.ins)
        return gs

    def b_load(ks):
        gs = []
        for n in range(10):
            q = sub_prog()
            q.s("s_mov_b32", t3, ks * 10240)
            q.buf_load(vBf[ks % NB].sub(4 * n, 4), vBo.sub(n // 4), sOO, t3, (n % 4) * 1024, tag=('B', ks))
            gs.append(q.ins)
        return gs

    def tr_list(ks):
        q = sub_prog()
        for T in range(4):
            u, e = T // 2, T % 2
            for e2 in range(2):
                q.ds_read("ds_read_b64_tr_b16", vAf[ks % 2].sub(T * 4 + 2 * e2, 2), vAa.sub(u),
                          (ks % 4) * 4096 + e2 * 512 + 8 * e)
        return q.ins

    p.v("v_lshlrev_b32", vTch.sub(0), 7, vLn)
    p.v("v_lshlrev_b32", vTch.sub(1), 10, vLn)
    for ks in range(4):
        for g in a_dma(ks):
            p.ins += g
    for ks in range(NB - 1):
        for g in b_load(ks):
            p.ins += g
    for k in range(16 if os.environ.get("TOUCH2", "0") == "1" else 0):
        p.s("s_add_u32", t3, sKO, k * 65536)
        p.buf_load(V(255), vTch.sub(1), sWO, t3, 0)
    for k in range(40 if os.environ.get("TOUCH2", "0") == "1" else 0):
        p.s("s_mov_b32", t3, k * 8192)
        p.buf_load(V(255), vTch.sub(0), sOO, t3, 0)
    p.wait_tag(('A', 0))
    p.ins += tr_list(0)
    for ks in range(32):
        if ks + 1 < 32:
            p.wait_tag(('A', ks + 1))
        p.wait(lgkm=0)
        groups = []
        if ks + 4 < 32:
            groups += a_dma(ks + 4)
        if ks + NB - 1 < 32:
            groups += b_load(ks + NB - 1)
        m = sub_prog()
        for n in range(10):
            for T in range(4):
                m.mfma16(C_(T, n), vAf[ks % 2].sub(T * 4, 4), vBf[ks % NB].sub(4 * n, 4),
                         C_(T, n) if ks > 0 else 0)
        tr = tr_list(ks + 1) if ks + 1 < 32 else []
        nm = len(m.ins)
        pos = {}
        for k, g in enumerate(groups):
            pos.setdefault(1 + (k * (nm - 3)) // max(1, len(groups)), []).extend(g)
        for k, t in enumerate(tr):
            pos.setdefault(2 + k * 2, []).append(t)
        for k, mi in enumerate(m.ins):
            p.ins.append(mi)
            p.ins += pos.get(k, [])
    p.nop(15)
    p.wait(vm=0, lgkm=0)
    p.barrier()
    for n in range(10):
        p.v("v_add_u32", vSt.sub(n), n * 32768, vSt0)
    for dT in range(1, 4):
        slot = 3 - dT
        p.label(f"K2_W{dT}")
        p.s("s_add_u32", t1, sWV, dT)
        p.s("s_and_b32", t1, t1, 3)
        p.s("s_mul_i32", t2, t1, 30720)
        p.s("s_add_u32", t2, t2, slot * 10240)
        p.v("v_add_u32", vWa_, t2, vRa)
        for T in range(4):
            p.s("s_cmp_lg_u32", None, t1, T)
            p.branch("s_cbranch_scc1", f"K2_W{dT}_{T}")
            for n in range(10):
                p.ds_write("ds_write_b128", vWa_, C_(T, n), n * 1024)
            p.label(f"K2_W{dT}_{T}")
    p.wait(lgkm=0)
    p.barrier()
    p.s("s_mul_i32", t2, sWV, 30720)
    p.v("v_add_u32", vWa_, t2, vRa)
    for T in range(4):
        p.s("s_cmp_lg_u32", None, sWV, T)
        p.branch("s_cbranch_scc1", f"K2_R{T}")
        u, e = T // 2, T % 2
        for n in range(10):
            t = V(48 + (n % 2) * 20, 20)
            for sl in range(3):
                p.ds_read("ds_read_b128", t.sub(4 * sl, 4), vWa_, sl * 10240 + n * 1024)
            for r in range(4):
                p.v("v_accvgpr_read_b32", t.sub(12 + r), C_(T, n).sub(r))
            for sl in range(3):
                for r in range(4):
                    p.v("v_add_f32", t.sub(12 + r), t.sub(12 + r), t.sub(4 * sl + r))
            p.v("v_cvt_pk_bf16_f32", t.sub(16), t.sub(12), t.sub(13))
            p.v("v_cvt_pk_bf16_f32", t.sub(17), t.sub(14), t.sub(15))
            p.buf_store(t.sub(16, 2), vSt.sub(n), sOT, 0, u * 64 + e * 8)
        p.wait(vm=0, lgkm=0)
        p.label(f"K2_R{T}")
    p.label("K2_END")
    p.raw("s_endpgm", 'end')
    ins = insert_waits(p.ins)
    ins = fix_hazards(ins)
    return ins


WS_XF = 64 << 20
WS_WQ = 80 << 20
WS_WO = 96 << 20
K0 = "prep_kernel"


def gen_k0():
    p = Prog()
    p.label(K0)
    sSrc = S(8, 4)
    sDst = S(12, 4)
    t1, t2, t3, t4, t5s = S(16), S(17), S(18), S(19), S(20)
    sBl = S(21)
    sWSp = S(22, 2)
    vA = V(1)
    vK = V(5)
    a, b_, c = V(6), V(7), V(8)
    vD0 = V(9)
    p.s("s_cmp_ge_u32", None, sWG, 1344)
    p.branch("s_cbranch_scc1", "K0_END")
    p.raw("s_load_dwordx2 s[22:23], s[0:1], 96", wr=['s22', 's23'])
    p.s("s_cmp_ge_u32", None, sWG, 320)
    p.branch("s_cbranch_scc1", "K0_W")
    p.s("s_cmp_ge_u32", None, sWG, 160)
    p.s("s_cselect_b32", sBl, 1, 0)
    p.s("s_mul_i32", t1, sBl, 160)
    p.s("s_sub_u32", t1, sWG, t1)
    p.s("s_mul_i32", t2, sBl, 40)
    p.s("s_add_u32", S(24), S(0), t2)
    p.s("s_addc_u32", S(25), S(1), 0)
    p.raw("s_load_dwordx2 s[4:5], s[24:25], 0", wr=['s4', 's5'])
    p.wait(lgkm=0)
    p.s("s_lshl_b32", t2, t1, 14)
    p.s("s_add_u32", sSrc.sub(0), S(4), t2)
    p.s("s_addc_u32", sSrc.sub(1), S(5), 0)
    p.s("s_and_b32", sSrc.sub(1), sSrc.sub(1), 0xffff)
    p.s("s_mov_b32", sSrc.sub(2), 16384)
    p.s("s_mov_b32", sSrc.sub(3), 0x20000)
    p.s("s_lshl_b32", t2, sWG, 14)
    p.s("s_add_u32", t2, t2, WS_XF)
    p.s("s_add_u32", sDst.sub(0), sWSp.sub(0), t2)
    p.s("s_addc_u32", sDst.sub(1), sWSp.sub(1), 0)
    p.s("s_and_b32", sDst.sub(1), sDst.sub(1), 0xffff)
    p.s("s_mov_b32", sDst.sub(2), 16384)
    p.s("s_mov_b32", sDst.sub(3), 0x20000)
    for m in range(4):
        p.v("v_add_u32", vK, 256 * m, V(0))
        p.v("v_and_b32", a, 15, vK)
        p.v("v_lshlrev_b32", a, 10, a)
        p.v("v_lshrrev_b32", b_, 6, vK)
        p.v("v_lshl_add_u32", a, b_, 6, a)
        p.v("v_bfe_u32", b_, vK, 4, 2)
        p.v("v_lshl_add_u32", V(1 + m), b_, 4, a)
    p.branch("s_branch", "K0_COPY")
    p.label("K0_W")
    p.s("s_sub_u32", t1, sWG, 320)
    p.s("s_cmp_ge_u32", None, t1, 512)
    p.branch("s_cbranch_scc1", "K0_WO")
    p.s("s_lshr_b32", sBl, t1, 8)
    p.s("s_mul_i32", t2, sBl, 40)
    p.s("s_add_u32", S(24), S(0), t2)
    p.s("s_addc_u32", S(25), S(1), 0)
    p.raw("s_load_dwordx2 s[4:5], s[24:25], 24", wr=['s4', 's5'])
    p.wait(lgkm=0)
    p.s("s_bfe_u32", t3, t1, (5 << 16) | 3)
    p.s("s_and_b32", t4, t1, 7)
    p.s("s_lshl_b32", t2, t4, 19)
    p.s("s_lshl_b32", t5s, t3, 8)
    p.s("s_add_u32", t2, t2, t5s)
    p.s("s_add_u32", sSrc.sub(0), S(4), t2)
    p.s("s_addc_u32", sSrc.sub(1), S(5), 0)
    p.s("s_and_b32", sSrc.sub(1), sSrc.sub(1), 0xffff)
    p.s("s_sub_u32", sSrc.sub(2), 64 * 8192, t5s)
    p.s("s_mov_b32", sSrc.sub(3), 0x20000)
    p.s("s_lshl_b32", t2, t1, 14)
    p.s("s_add_u32", t2, t2, WS_WQ)
    p.s("s_add_u32", sDst.sub(0), sWSp.sub(0), t2)
    p.s("s_addc_u32", sDst.sub(1), sWSp.sub(1), 0)
    p.s("s_and_b32", sDst.sub(1), sDst.sub(1), 0xffff)
    p.s("s_mov_b32", sDst.sub(2), 16384)
    p.s("s_mov_b32", sDst.sub(3), 0x20000)
    for m in range(4):
        p.v("v_add_u32", vK, 256 * m, V(0))
        p.v("v_lshrrev_b32", a, 4, vK)
        p.v("v_and_b32", b_, 3, a)
        p.v("v_lshlrev_b32", b_, 2, b_)
        p.v("v_and_b32", c, 15, vK)
        p.v("v_xor_b32", b_, b_, c)
        p.v("v_lshlrev_b32", b_, 4, b_)
        p.v("v_lshl_add_u32", V(1 + m), a, 13, b_)
    p.branch("s_branch", "K0_COPY")
    p.label("K0_WO")
    p.s("s_sub_u32", t1, t1, 512)
    p.s("s_lshr_b32", sBl, t1, 8)
    p.s("s_mul_i32", t2, sBl, 40)
    p.s("s_add_u32", S(24), S(0), t2)
    p.s("s_addc_u32", S(25), S(1), 0)
    p.raw("s_load_dwordx2 s[4:5], s[24:25], 32", wr=['s4', 's5'])
    p.wait(lgkm=0)
    p.s("s_bfe_u32", t3, t1, (3 << 16) | 5)
    p.s("s_and_b32", t4, t1, 31)
    p.s("s_lshl_b32", t2, t4, 17)
    p.s("s_lshl_b32", t5s, t3, 7)
    p.s("s_add_u32", t2, t2, t5s)
    p.s("s_add_u32", sSrc.sub(0), S(4), t2)
    p.s("s_addc_u32", sSrc.sub(1), S(5), 0)
    p.s("s_and_b32", sSrc.sub(1), sSrc.sub(1), 0xffff)
    p.s("s_sub_u32", sSrc.sub(2), 128 * 1024, t5s)
    p.s("s_mov_b32", sSrc.sub(3), 0x20000)
    p.s("s_lshl_b32", t2, t1, 14)
    p.s("s_add_u32", t2, t2, WS_WO)
    p.s("s_add_u32", sDst.sub(0), sWSp.sub(0), t2)
    p.s("s_addc_u32", sDst.sub(1), sWSp.sub(1), 0)
    p.s("s_and_b32", sDst.sub(1), sDst.sub(1), 0xffff)
    p.s("s_mov_b32", sDst.sub(2), 16384)
    p.s("s_mov_b32", sDst.sub(3), 0x20000)
    for m in range(4):
        p.v("v_add_u32", vK, 256 * m, V(0))
        p.v("v_lshrrev_b32", a, 3, vK)
        p.v("v_bfe_u32", b_, a, 1, 1)
        p.v("v_lshlrev_b32", b_, 2, b_)
        p.v("v_and_b32", c, 7, vK)
        p.v("v_xor_b32", b_, b_, c)
        p.v("v_lshlrev_b32", b_, 4, b_)
        p.v("v_lshl_add_u32", V(1 + m), a, 10, b_)
    p.label("K0_COPY")
    p.v("v_lshlrev_b32", vD0, 4, V(0))
    for m in range(4):
        p.buf_load(V(12 + 4 * m, 4), V(1 + m), sSrc, 0, 0, flags=os.environ.get("K0LD", " nt"))
    for m in range(4):
        p.s("s_mov_b32", t1, 4096 * m)
        p.buf_store(V(12 + 4 * m, 4), vD0, sDst, t1, 0, flags=os.environ.get("K0ST", ""))
    p.label("K0_END")
    p.raw("s_endpgm", 'end')
    ins = insert_waits(p.ins)
    ins = fix_hazards(ins)
    return ins


HEADER = open(os.path.join(os.path.dirname(__file__), "header.txt")).read()


def descriptor(name, vg, sg, acc):
    return f""".amdhsa_kernel {name}
  .amdhsa_next_free_vgpr {vg}
  .amdhsa_next_free_sgpr {sg}
  .amdhsa_accum_offset {acc}
  .amdhsa_group_segment_fixed_size 0
  .amdhsa_kernarg_size 104
  .amdhsa_user_sgpr_count 2
  .amdhsa_user_sgpr_kernarg_segment_ptr 1
  .amdhsa_system_sgpr_workgroup_id_x 1
.end_amdhsa_kernel
"""


def main():
    k1 = gen_k1()
    k2 = gen_k2()
    out = HEADER
    out += f"; @launch kernel={K0} grid=(1344,1,1) block=(256,1,1) lds=0\n"
    out += f"; @launch kernel={K1} grid=(512,1,1) block=(128,1,1) lds={LDS_BYTES}\n"
    out += f"; @launch kernel={K2} grid=(256,1,1) block=(256,1,1) lds=122880\n"
    out += '.amdgcn_target "amdgcn-amd-amdhsa--gfx950"\n.text\n'
    out += f".globl {K1}\n.p2align 8\n.type {K1},@function\n"
    out += render(k1)
    out += f".globl {K2}\n.p2align 8\n.type {K2},@function\n"
    out += render(k2)
    out += f".globl {K0}\n.p2align 8\n.type {K0},@function\n"
    out += render(gen_k0())
    out += '.section .rodata,"a"\n.p2align 6\n'
    out += descriptor(K1, 512, 96, 256)
    out += ".p2align 6\n"
    out += descriptor(K2, 512, 96, 256)
    out += ".p2align 6\n"
    out += descriptor(K0, 32, 32, 32)
    dst = sys.argv[1] if len(sys.argv) > 1 else os.path.join(os.path.dirname(__file__), "..", "cdna_kernels", NAME + ".s")
    open(dst, "w").write(out)
    print("wrote", dst, len(out), "bytes;", len(k1), "+", len(k2), "instructions")


if __name__ == "__main__":
    main()
```

```python
import sys, os, math
sys.path.insert(0, os.path.dirname(__file__))
from asmlib import *
from asmlib import _flat

NAME = "concat_heads__mha_block_cached__gqa_block_cached__near_ridge"
K1 = NAME + "_kernel"
K2 = "oproj_kernel"

SCALE_LOG2E = (128 ** -0.5) * math.log2(math.e)
import struct


def fbits(x):
    return struct.unpack('<I', struct.pack('<f', x))[0]


THR_RAW = 8.0 / SCALE_LOG2E

NT = os.environ.get("KV_NT", "1") == "1"
KVFLAGS = " nt" if NT else ""

sKARG = S(0, 2)
sWG = S(2)
sPA = 4
sPB = 16
sWS = S(26, 2)
sW4096 = S(30)
sRND = S(31)
sB = S(32)
sH = S(33)
sPOFF = S(34)
sT0 = S(35)
sK = S(36, 4)
sV = S(40, 4)
sKN = S(44, 4)
sVN = S(48, 4)
sW = S(52, 4)
sX = S(56, 4)
sO = S(60, 4)
sKOFF = S(64)
sVOFF = S(65)
sCNT = S(66)
sC = S(67)
sT1 = S(68)
sT2 = S(69)
sCMP = S(70, 2)
sTHR = S(72)
sWOFF = S(73)
sT3 = S(74)
sT4 = S(75)
sT0OFF = S(83)
sW5120 = S(84)
sPIDX = S(85)
sXOFF = [S(88), S(89), S(90), S(91)]
sWOD = S(92, 4)
sTYPE = S(100)
sWOFLAG = S(87)
sKVF = S(14)
sW5120x4 = S(86)
WOIN = os.environ.get('WOIN', '0') == '1'
DESYNC = os.environ.get('DESYNC', '0') == '1'
KVLATE = os.environ.get('KVLATE', '0') == '1'
WQIMG = os.environ.get('WQIMG', '1') == '1'
WOIMG = os.environ.get('WOIMG', '1') == '1'
WOMID = os.environ.get('WOMID', '0') == '1'
sDEST = S(101)
sQS = S(96, 4)
WS_QS = 112 << 20

vS = [V(0, 40), V(40, 40)]
vP = V(80, 20)
vKf = V(100, 32)
vVf = V(132, 32)
vNM = V(164, 20)
vL = V(184, 20)
vONE = V(204, 4)
vMNEW = V(208, 5)
vTMP = V(213, 5)
vKa = V(218, 4)
vVa = V(222, 4)
vWa = V(226, 4)
vKd = V(230, 4)
vVd = V(234)
vWd = V(235)
vXo = V(236, 5)
vOo = V(241)
vD = V(242)
vLANE = V(243)
vT = V(244, 8)
vTW = V(252)
vTX = V(253)
vDUM = V(255)
aO = A(0, 160)
aQ = A(160, 80)

LDS_K = 0
LDS_V = 32768
LDS_W = 49152
LDS_BYTES = 81920


def S_(buf, kt, n):
    return vS[buf].sub(kt * 20 + n * 4, 4)


def O_(T, n):
    return aO.sub(T * 20 + n * 4, 4)


def Q_(n, ds):
    return aQ.sub(n * 16 + ds * 4, 4)


def Kf_(kt, ds):
    return vKf.sub((kt * 4 + ds) * 4, 4)


def Vf_(T):
    return vVf.sub(T * 4, 4)


def sub_prog():
    return Prog()


def k1_setup(p):
    p.comment("---- setup")
    p.s("s_cmp_ge_u32", None, sWG, 512)
    p.branch("s_cbranch_scc1", "K1_END")
    p.raw(f"s_load_dwordx8 s[4:11], s[0:1], 0", wr=regs('s', 4, 8))
    p.raw(f"s_load_dwordx2 s[12:13], s[0:1], 32", wr=regs('s', 12, 2))
    p.raw(f"s_load_dwordx8 s[16:23], s[0:1], 40", wr=regs('s', 16, 8))
    p.raw(f"s_load_dwordx2 s[24:25], s[0:1], 72", wr=regs('s', 24, 2))
    p.raw(f"s_load_dwordx2 s[26:27], s[0:1], 96", wr=regs('s', 26, 2))
    p.v("v_and_b32", vLANE, 63, V(0))
    p.v("v_lshrrev_b32", vT.sub(0), 6, V(0))
    p.nop(1)
    p.add(Ins(f"v_readfirstlane_b32 {sT0}, {vT.sub(0)}", 'valu', [vT.sub(0)], [sT0]))
    p.nop(3)
    p.s("s_lshl_b32", sW4096, sT0, 12)
    p.s("s_mul_i32", sT4, sT0, 80)
    p.s("s_mul_i32", sW5120, sT0, 5120)
    p.s("s_and_b32", sT1, sWG, 7)
    p.s("s_lshr_b32", sT2, sWG, 3)
    p.s("s_lshl_b32", sT3, sT1, 2)
    p.s("s_add_u32", sT3, sT3, sT2)
    p.s("s_and_b32", sT3, sT3, 31)
    p.s("s_lshl_b32", sT3, sT3, 13)
    p.s("s_add_u32", sT0OFF, sT3, sW4096)
    p.s("s_lshr_b32", sB, sT2, 2)
    p.s("s_and_b32", sT2, sT2, 3)
    p.s("s_lshl_b32", sT1, sT1, 2)
    p.s("s_add_u32", sH, sT1, sT2)
    p.s("s_lshl_b32", sT1, sB, 5)
    p.s("s_add_u32", sPIDX, sT1, sH)
    p.s("s_lshl_b32", sPOFF, sPIDX, 18)
    p.s("s_mov_b32", sC, hex(fbits(SCALE_LOG2E)))
    p.s("s_mov_b32", sTHR, hex(fbits(8.0)))
    i_ = vT.sub(1)
    g_ = vT.sub(2)
    rp = vT.sub(3)
    cc = vT.sub(4)
    t5 = vT.sub(5)
    t6 = vT.sub(6)
    p.v("v_and_b32", i_, 15, vLANE)
    p.v("v_lshrrev_b32", g_, 4, vLANE)
    p.v("v_bfe_u32", rp, vLANE, 2, 2)
    p.v("v_and_b32", cc, 3, vLANE)
    for k in range(4):
        p.v("v_mov_b32", vONE.sub(k), "0x3f803f80")
    for ds in range(4):
        p.v("v_add_u32", t5, 4 * ds, g_)
        p.v("v_xor_b32", t5, t5, i_)
        p.v("v_lshlrev_b32", t5, 4, t5)
        p.v("v_lshl_add_u32", vKa.sub(ds), i_, 8, t5)
    for u in range(4):
        p.v("v_xor_b32", t5, u, rp)
        p.v("v_lshl_add_u32", t5, t5, 2, cc)
        p.v("v_lshlrev_b32", t5, 4, t5)
        p.v("v_lshl_add_u32", t6, g_, 2, rp)
        p.v("v_lshl_add_u32", vVa.sub(u), t6, 8, t5)
        p.v("v_lshl_add_u32", t6, g_, 3, rp)
        p.v("v_lshl_add_u32", t6, t6, 8, t5)
        p.v("v_add_u32", vWa.sub(u), LDS_W, t6)
    for j in range(4):
        p.v("v_add_u32", t5, 4 * j, g_)
        p.v("v_xor_b32", t5, t5, i_)
        p.v("v_lshlrev_b32", t5, 4, t5)
        p.v("v_lshl_add_u32", vKd.sub(j), g_, 8, t5)
    p.v("v_lshlrev_b32", t5, 2, g_)
    p.v("v_xor_b32", t5, t5, i_)
    p.v("v_lshlrev_b32", t5, 4, t5)
    p.v("v_lshl_add_u32", vVd, g_, 8, t5)
    p.v("v_lshl_add_u32", vWd, g_, 13, t5)
    p.v("v_lshlrev_b32", vOo, 4, vLANE)
    p.s("s_mul_i32", sT1, sT0, 5 * 16384)
    for n in range(5):
        p.v("v_add_u32", t5, sT1, vOo)
        p.v("v_add_u32", vXo.sub(n), n * 16384, t5)
    p.v("v_lshlrev_b32", vTX, 7, vLANE)
    p.v("v_lshrrev_b32", t5, 1, vLANE)
    p.v("v_and_b32", t6, 1, vLANE)
    p.v("v_lshlrev_b32", t6, 7, t6)
    p.v("v_lshl_add_u32", vTW, t5, 13, t6)
    p.wait(lgkm=0)
    for srd, pbase in ((sK, sPA + 2), (sV, sPA + 4), (sKN, sPB + 2), (sVN, sPB + 4)):
        p.s("s_add_u32", srd.sub(0), S(pbase), sPOFF)
        p.s("s_addc_u32", srd.sub(1), S(pbase + 1), 0)
        p.s("s_and_b32", srd.sub(1), srd.sub(1), 0xffff)
        p.s("s_mov_b32", srd.sub(2), 262144)
        p.s("s_mov_b32", srd.sub(3), 0x20000)
    p.s("s_mov_b32", sRND, 0)
    if not KVLATE:
        kv_prefill(p)
    k1_setup_tail(p, i_, g_, t5, t6)


def kv_prefill(p):
    def kd(slot, tile):
        p.s("s_add_u32", "m0", sW4096, LDS_K + slot * 8192)
        p.s("s_add_u32", sKOFF, sT0OFF, tile * 8192)
        p.s("s_and_b32", sKOFF, sKOFF, 0x3ffff)
        for j in range(4):
            p.buf_dma(vKd.sub(j), sK, sKOFF, j * 1024, flags=KVFLAGS)
    def vd(slot, tile):
        p.s("s_add_u32", "m0", sW4096, LDS_V + slot * 8192)
        p.s("s_add_u32", sVOFF, sT0OFF, tile * 8192)
        p.s("s_and_b32", sVOFF, sVOFF, 0x3ffff)
        for j in range(4):
            p.buf_dma(vVd, sV, sVOFF, j * 1024, flags=KVFLAGS)
    kd(0, 0); kd(1, 1); kd(2, 2); vd(0, 0); kd(3, 3); vd(1, 1)


def k1_setup_tail(p, i_, g_, t5, t6):
    p.s("s_lshr_b32", sT1, sWG, 3)
    p.s("s_lshr_b32", sT2, sT1, 5)
    p.s("s_xor_b32", sT1, sT1, sT2)
    p.s("s_and_b32", sTYPE, sT1, 1 if DESYNC else 0)
    p.s("s_mov_b32", sDEST, 0)
    p.s("s_mov_b32", sWOFLAG, 0)
    p.s("s_mul_i32", sW5120x4, sT0, 20480)
    p.s("s_mul_i32", sT1, sWG, 40960)
    p.s("s_add_u32", sT1, sT1, WS_QS)
    p.s("s_add_u32", sQS.sub(0), sWS.sub(0), sT1)
    p.s("s_addc_u32", sQS.sub(1), sWS.sub(1), 0)
    p.s("s_and_b32", sQS.sub(1), sQS.sub(1), 0xffff)
    p.s("s_mov_b32", sQS.sub(2), 40960)
    p.s("s_mov_b32", sQS.sub(3), 0x20000)
    k1_xw_setup(p, sRND)
    k1_touch(p)
    p.s("s_mov_b32", sKVF, 0)
    if WOIN:
        p.s("s_cmp_ge_u32", None, sWG, 256)
        p.s("s_cselect_b32", sO.sub(0), S(sPB + 8), S(sPA + 8))
        p.s("s_cselect_b32", sO.sub(1), S(sPB + 9), S(sPA + 9))
        p.s("s_bfe_u32", sT3, sWG, (3 << 16) | 5)
        p.s("s_and_b32", sT2, sWG, 31)
        p.s("s_lshl_b32", sT2, sT2, 17)
        p.s("s_lshl_b32", sT1, sT3, 7)
        p.s("s_add_u32", sT2, sT2, sT1)
        p.s("s_add_u32", sO.sub(0), sO.sub(0), sT2)
        p.s("s_addc_u32", sO.sub(1), sO.sub(1), 0)
        p.s("s_and_b32", sO.sub(1), sO.sub(1), 0xffff)
        p.s("s_sub_u32", sO.sub(2), 128 * 1024, sT1)
        p.s("s_mov_b32", sO.sub(3), 0x20000)
        p.s("s_lshl_b32", sT2, sWG, 14)
        p.s("s_add_u32", sT2, sT2, WS_WO)
        p.s("s_add_u32", sWOD.sub(0), sWS.sub(0), sT2)
        p.s("s_addc_u32", sWOD.sub(1), sWS.sub(1), 0)
        p.s("s_and_b32", sWOD.sub(1), sWOD.sub(1), 0xffff)
        p.s("s_mov_b32", sWOD.sub(2), 16384)
        p.s("s_mov_b32", sWOD.sub(3), 0x20000)
        for m in range(8):
            p.v("v_add_u32", t5, 128 * m, V(0))
            p.v("v_lshrrev_b32", t6, 3, t5)
            p.v("v_bfe_u32", i_, t6, 1, 1)
            p.v("v_lshlrev_b32", i_, 2, i_)
            p.v("v_and_b32", g_, 7, t5)
            p.v("v_xor_b32", i_, i_, g_)
            p.v("v_lshlrev_b32", i_, 4, i_)
            p.v("v_lshl_add_u32", t5, t6, 10, i_)
            p.buf_load(V(164 + 4 * m, 4), t5, sO, 0, 0, flags=" nt")


def k1_xw_setup(p, rnd_reg):
    p.s("s_lshl_b32", sT1, rnd_reg, 4)
    p.s("s_add_u32", sT1, sT1, sB)
    p.s("s_mul_i32", sT1, sT1, 163840)
    p.s("s_add_u32", sT1, sT1, WS_XF)
    p.s("s_add_u32", sX.sub(0), sWS.sub(0), sT1)
    p.s("s_addc_u32", sX.sub(1), sWS.sub(1), 0)
    p.s("s_and_b32", sX.sub(1), sX.sub(1), 0xffff)
    p.s("s_mov_b32", sX.sub(2), 163840)
    p.s("s_mov_b32", sX.sub(3), 0x20000)
    if not WQIMG:
        p.s("s_cmp_eq_u32", None, rnd_reg, 0)
        p.s("s_cselect_b32", sW.sub(0), S(sPA + 6), S(sPB + 6))
        p.s("s_cselect_b32", sW.sub(1), S(sPA + 7), S(sPB + 7))
        p.s("s_lshl_b32", sT1, sH, 8)
        p.s("s_add_u32", sW.sub(0), sW.sub(0), sT1)
        p.s("s_addc_u32", sW.sub(1), sW.sub(1), 0)
        p.s("s_and_b32", sW.sub(1), sW.sub(1), 0xffff)
        p.s("s_sub_u32", sW.sub(2), 512 * 8192, sT1)
        p.s("s_mov_b32", sW.sub(3), 0x20000)
        return
    p.s("s_lshl_b32", sT1, rnd_reg, 5)
    p.s("s_add_u32", sT1, sT1, sH)
    p.s("s_lshl_b32", sT1, sT1, 17)
    p.s("s_add_u32", sT1, sT1, WS_WQ)
    p.s("s_add_u32", sW.sub(0), sWS.sub(0), sT1)
    p.s("s_addc_u32", sW.sub(1), sWS.sub(1), 0)
    p.s("s_and_b32", sW.sub(1), sW.sub(1), 0xffff)
    p.s("s_mov_b32", sW.sub(2), 131072)
    p.s("s_mov_b32", sW.sub(3), 0x20000)


def k1_touch(p):
    if os.environ.get("TOUCH", "0") == "0":
        return
    p.s("s_lshl_b32", sT1, sW4096, 9)
    for k in range(8):
        p.s("s_add_u32", sT2, sT1, 32 * k * 8192)
        p.buf_load(vDUM, vTW, sW, sT2, 0)
    p.s("s_lshl_b32", sT1, sT4, 10)
    for k in range(10):
        p.s("s_add_u32", sT2, sT1, k * 8192)
        p.buf_load(vDUM, vTX, sX, sT2, 0)


def k1_round_setup(p):
    p.comment("---- round setup")
    p.s("s_lshl_b32", sT2, sRND, 9)
    p.s("s_add_u32", sT2, sT2, sPIDX)
    p.s("s_mul_i32", sT2, sT2, 40960)
    p.s("s_add_u32", sO.sub(0), sWS.sub(0), sT2)
    p.s("s_addc_u32", sO.sub(1), sWS.sub(1), 0)
    p.s("s_and_b32", sO.sub(1), sO.sub(1), 0xffff)
    p.s("s_mov_b32", sO.sub(2), 40960)
    p.s("s_mov_b32", sO.sub(3), 0x20000)
    p.s("s_add_u32", sKOFF, sT0OFF, 4 * 8192)
    p.s("s_and_b32", sKOFF, sKOFF, 0x3ffff)
    p.s("s_add_u32", sVOFF, sT0OFF, 2 * 8192)
    p.s("s_and_b32", sVOFF, sVOFF, 0x3ffff)


def k1_qproj(p):
    p.comment("---- Q projection")
    p.label("K1_QP")
    Xs = [Reg('v', 0 + 20 * k, 20) for k in range(4)]
    Wf = [vVf, vKf]

    def w_dma(cs):
        q = sub_prog()
        buf = cs % 4
        if not WQIMG:
            for j in range(4):
                q.s("s_add_u32", "m0", sW4096, LDS_W + buf * 8192 + j * 1024)
                q.s("s_lshl_b32", sWOFF, sW4096, 5)
                q.s("s_add_u32", sWOFF, sWOFF, (32 * cs + 4 * j) * 8192)
                q.buf_dma(vWd, sW, sWOFF, 0, tag=('W', cs))
            return [q.ins[0:4], q.ins[4:8], q.ins[8:12], q.ins[12:16]]
        q.s("s_add_u32", "m0", sW4096, LDS_W + buf * 8192)
        q.s("s_add_u32", sWOFF, sW4096, cs * 8192)
        for j in range(4):
            q.buf_dma(vOo, sW, sWOFF, j * 1024, tag=('W', cs))
        if os.environ.get("QNOW", "0") == "1":
            return []
        return [q.ins[0:3], q.ins[3:4], q.ins[4:5], q.ins[5:6]]

    def x_load(cs):
        q = sub_prog()
        for n in range(5):
            q.buf_load(Xs[cs % 4].sub(4 * n, 4), vXo.sub(n), sX, sXOFF[cs // 4], (cs % 4) * 1024, tag=('X', cs))
        if os.environ.get("QNOX", "0") == "1":
            return []
        return [[i] for i in q.ins]

    def tr_list(cs):
        q = sub_prog()
        buf = cs % 4
        for T in range(8):
            u, e = T // 2, T % 2
            for e2 in range(2):
                q.ds_read("ds_read_b64_tr_b16", Wf[cs % 2].sub(T * 4 + 2 * e2, 2), vWa.sub(u),
                          buf * 8192 + e2 * 1024 + 8 * e)
        return q.ins

    for k in range(4):
        p.s("s_mov_b32", sXOFF[k], k * 4096)
    p.wait(lgkm=0)
    p.barrier()
    for cs in range(4):
        for grp in w_dma(cs):
            p.ins += grp
    for cs in range(3):
        for grp in x_load(cs):
            p.ins += grp
    if KVLATE:
        p.s("s_cmp_lg_u32", None, sKVF, 0)
        p.branch("s_cbranch_scc1", "K1_KVSKIP")
        kv_prefill(p)
        p.s("s_mov_b32", sKVF, 1)
        p.wait(vm=24)
        p.branch("s_branch", "K1_KVJ")
        p.label("K1_KVSKIP")
        p.wait(vm=0)
        p.label("K1_KVJ")
    p.wait_tag(('W', 0))
    p.wait(lgkm=0)
    p.barrier()
    p.ins += tr_list(0)
    for cs in range(16):
        if cs + 1 < 16:
            p.wait_tag(('W', cs + 1))
        p.wait(lgkm=0)
        p.barrier()
        groups = []
        if cs + 4 < 16:
            groups += w_dma(cs + 4)
        if cs + 3 < 16:
            groups += x_load(cs + 3)
        m = sub_prog()
        for n in range(5):
            for T in range(8):
                m.mfma16(O_(T, n), Wf[cs % 2].sub(T * 4, 4), Xs[cs % 4].sub(4 * n, 4),
                         O_(T, n) if cs > 0 else 0)
        tr = tr_list(cs + 1) if cs + 1 < 16 else []
        seq = []
        nm = len(m.ins)
        pos = {}
        if os.environ.get("QP_IL", "1") == "0":
            for g in groups:
                p.ins += g
            groups = []
        for k, g in enumerate(groups):
            pos.setdefault(2 + (k * (nm - 4)) // max(1, len(groups)), []).extend(g)
        for k, t in enumerate(tr):
            pos.setdefault(1 + k * 2, []).append(t)
        for k, mi in enumerate(m.ins):
            seq.append(mi)
            seq += pos.get(k, [])
        p.ins += seq
    if WOIN:
        p.s("s_cmp_lg_u32", None, sWOFLAG, 0)
        p.branch("s_cbranch_scc1", "K1_WOSKIP")
        p.s("s_lshr_b32", sT2, sW4096, 2)
        for m in range(8):
            p.s("s_add_u32", sT1, sT2, 2048 * m)
            p.buf_store(V(164 + 4 * m, 4), vOo, sWOD, sT1, 0)
        p.s("s_mov_b32", sWOFLAG, 1)
        p.label("K1_WOSKIP")
    p.s("s_cmp_lg_u32", None, sDEST, 0)
    p.branch("s_cbranch_scc1", "K1_QSTASH")
    k = 0
    for n in range(5):
        for ds in range(4):
            for half in range(2):
                src = O_(2 * ds + half, n)
                t = V((k % 4) * 8, 6)
                k += 1
                for r in range(4):
                    p.v("v_accvgpr_read_b32", t.sub(r), src.sub(r))
                for r in range(4):
                    p.v("v_mul_f32", t.sub(r), sC, t.sub(r))
                p.v("v_cvt_pk_bf16_f32", t.sub(4), t.sub(0), t.sub(1))
                p.v("v_cvt_pk_bf16_f32", t.sub(5), t.sub(2), t.sub(3))
                p.v("v_accvgpr_write_b32", Q_(n, ds).sub(2 * half), t.sub(4))
                p.v("v_accvgpr_write_b32", Q_(n, ds).sub(2 * half + 1), t.sub(5))
    p.s("s_cmp_eq_u32", None, sTYPE, 0)
    p.branch("s_cbranch_scc1", "K1_QDONE")
    p.s("s_mov_b32", sDEST, 1)
    p.s("s_mov_b32", sT3, 1)
    k1_xw_setup(p, sT3)
    p.branch("s_branch", "K1_QP")
    p.label("K1_QSTASH")
    k = 0
    for n in range(5):
        for ds in range(4):
            t = V((k % 4) * 12, 12)
            k += 1
            for half in range(2):
                for r in range(4):
                    p.v("v_accvgpr_read_b32", t.sub(4 * half + r), O_(2 * ds + half, n).sub(r))
            for r in range(8):
                p.v("v_mul_f32", t.sub(r), sC, t.sub(r))
            for r in range(4):
                p.v("v_cvt_pk_bf16_f32", t.sub(8 + r), t.sub(2 * r), t.sub(2 * r + 1))
            p.s("s_add_u32", sT1, sW5120x4, (n * 4 + ds) * 1024)
            p.buf_store(t.sub(8, 4), vOo, sQS, sT1, 0)
    p.label("K1_QDONE")


def k1_acc_init(p):
    for k in range(160):
        p.v("v_accvgpr_write_b32", aO.sub(k), 0)
    for k in range(20):
        p.v("v_mov_b32", vL.sub(k), 0)
        p.v("v_mov_b32", vNM.sub(k), 0)


def k1_stash_load(p):
    for n in range(5):
        for ds in range(4):
            p.s("s_add_u32", sT1, sW5120x4, (n * 4 + ds) * 1024)
            p.buf_load(Q_(n, ds), vOo, sQS, sT1, 0)
    p.wait(vm=0)


def kfrag_reads(slot):
    q = sub_prog()
    for kt in range(2):
        for ds in range(4):
            q.ds_read("ds_read_b128", Kf_(kt, ds), vKa.sub(ds), LDS_K + slot * 8192 + kt * 4096)
    return q.ins


def vfrag_reads(slot):
    q = sub_prog()
    for T in range(8):
        u, e = T // 2, T % 2
        for e2 in range(2):
            q.ds_read("ds_read_b64_tr_b16", Vf_(T).sub(2 * e2, 2), vVa.sub(u),
                      LDS_V + slot * 8192 + e2 * 4096 + 8 * e)
    return q.ins


def qk_list(buf, n):
    q = sub_prog()
    for ds in range(4):
        for kt in range(2):
            q.mfma16(S_(buf, kt, n), Kf_(kt, ds), Q_(n, ds), S_(buf, kt, n) if ds > 0 else vNM.sub(4 * n, 4))
    return q.ins


def sm_list(buf, n):
    q = sub_prog()
    for kt in range(2):
        for r in range(4):
            s = S_(buf, kt, n).sub(r)
            q.v("v_exp_f32", s, s)
    for kt in range(2):
        for rr in range(2):
            q.v("v_cvt_pk_bf16_f32", vP.sub(n * 4 + 2 * kt + rr), S_(buf, kt, n).sub(2 * rr), S_(buf, kt, n).sub(2 * rr + 1))
    return q.ins


def pv_list(n):
    q = sub_prog()
    for T in range(8):
        q.mfma16(O_(T, n), Vf_(T), vP.sub(n * 4, 4), O_(T, n))
    q.mfma16(vL.sub(4 * n, 4), vONE, vP.sub(n * 4, 4), vL.sub(4 * n, 4))
    return q.ins


def mx_list(buf, n):
    q = sub_prog()
    m = vMNEW.sub(n)
    a, b = S_(buf, 0, n), S_(buf, 1, n)
    q.v("v_max3_f32", m, a.sub(0), a.sub(1), a.sub(2))
    q.v("v_max3_f32", m, m, a.sub(3), b.sub(0))
    q.v("v_max3_f32", m, m, b.sub(1), b.sub(2))
    q.v("v_max_f32", m, m, b.sub(3))
    return q.ins


def xlane_max(p, n):
    m = vMNEW.sub(n)
    t = vTMP.sub(n)
    p.v("v_mov_b32", t, m)
    p.add(Ins(f"v_permlane32_swap_b32 {t}, {m}", 'perm', [t, m], [t, m]))
    p.v("v_max_f32", m, m, t)
    p.v("v_mov_b32", t, m)
    p.add(Ins(f"v_permlane16_swap_b32 {t}, {m}", 'perm', [t, m], [t, m]))
    p.v("v_max_f32", m, m, t)


rescale_sites = []
INSTR = os.environ.get("INSTR", "0") == "1"
sST = S(76, 4)
sTM = S(80, 2)
sSTI = S(82)


def stamp_setup(p):
    if not INSTR:
        return
    p.s("s_lshl_b32", sT1, sWG, 9)
    p.s("s_add_u32", sT1, sT1, 1 << 27)
    p.s("s_add_u32", sST.sub(0), sWS.sub(0), sT1)
    p.s("s_addc_u32", sST.sub(1), sWS.sub(1), 0)
    p.s("s_and_b32", sST.sub(1), sST.sub(1), 0xffff)
    p.s("s_mov_b32", sST.sub(2), 512)
    p.s("s_mov_b32", sST.sub(3), 0x20000)
    p.s("s_lshr_b32", sSTI, sW4096, 4)


def stamp(p):
    if not INSTR:
        return
    p.raw(f"s_memtime {sTM}", wr=[sTM])
    p.wait(lgkm=0)
    p.v("v_mov_b32", vT.sub(6), sTM.sub(0))
    p.v("v_mov_b32", vT.sub(7), sTM.sub(1))
    p.v("v_mov_b32", vT.sub(5), sSTI)
    p.buf_store(vT.sub(6, 2), vT.sub(5), sST, 0, 0)
    p.s("s_add_u32", sSTI, sSTI, 8)


NODMA = os.environ.get("NODMA", "0") == "1"


def iteration(p, tm, do_qk=True, do_sm=True, kdma=True, vdma=True, first=False, pre_k=None, pre_v=None, hook=None):
    cur = tm % 2
    nxt = 1 - cur
    p.wait(vm=int(os.environ.get("WAITVM", "16")), lgkm=0)
    if os.environ.get("NOBAR", "0") != "1":
        p.barrier()
    if hook:
        hook(p)
    dg = []
    if kdma:
        q = sub_prog()
        if pre_k:
            pre_k(q)
        q.s("s_add_u32", "m0", sW4096, LDS_K + ((tm + 1) % 4) * 8192)
        q.nop(0)
        q.buf_dma(vKd.sub(0), sK, sKOFF, 0, flags=KVFLAGS)
        dg.append(q.ins)
        for j in range(1, 4):
            q = sub_prog()
            q.buf_dma(vKd.sub(j), sK, sKOFF, j * 1024, flags=KVFLAGS)
            if j == 3:
                q.s("s_add_u32", sKOFF, sKOFF, 8192)
                q.s("s_and_b32", sKOFF, sKOFF, 0x3ffff)
            dg.append(q.ins)
    if vdma:
        q = sub_prog()
        if pre_v:
            pre_v(q)
        q.s("s_add_u32", "m0", sW4096, LDS_V + ((tm + 3) % 4) * 8192)
        q.nop(0)
        q.buf_dma(vVd, sV, sVOFF, 0, flags=KVFLAGS)
        dg.append(q.ins)
        for j in range(1, 4):
            q = sub_prog()
            q.buf_dma(vVd, sV, sVOFF, j * 1024, flags=KVFLAGS)
            if j == 3:
                q.s("s_add_u32", sVOFF, sVOFF, 8192)
                q.s("s_and_b32", sVOFF, sVOFF, 0x3ffff)
            dg.append(q.ins)
    if NODMA:
        dg = [[i for i in g if i.kind != 'vm_dma'] for g in dg]
    while len(dg) < 8:
        dg.append([])
    if os.environ.get("MAIN_IL", "1") == "0":
        for g in dg:
            p.ins += g
        dg = [[] for _ in range(8)]
    E = []
    VR = vfrag_reads(tm % 4) if do_sm else E
    QK = [qk_list(nxt, n) if do_qk else E for n in range(5)]
    SM = [sm_list(cur, n) if do_sm else E for n in range(5)]
    PV = [pv_list(n) if do_sm else E for n in range(5)]
    MX = [mx_list(nxt, n) if do_qk else E for n in range(5)]
    KR = kfrag_reads((tm + 2) % 4) if do_qk else E
    dg = [[g] if g else [] for g in dg]
    blocks = [
        (QK[0], VR[:8] + SM[0]),
        (QK[1], dg[0] + VR[8:] + SM[1]),
        (PV[0], dg[1] + SM[2]),
        (QK[2], dg[2] + SM[3]),
        (PV[1], dg[3] + SM[4]),
        (QK[3], dg[4] + MX[0]),
        (PV[2], dg[5] + MX[1]),
        (QK[4], dg[6] + MX[2]),
        (PV[3], dg[7] + KR),
        (PV[4], MX[3] + MX[4]),
    ]
    if os.environ.get("NOCOMP", "0") == "1":
        for g in dg:
            p.ins += _flat(g)
        return
    for mf, fl in blocks:
        p.ins += interleave(mf, fl)
    if do_qk:
        if first:
            for n in range(5):
                xlane_max(p, n)
            for n in range(5):
                for r in range(4):
                    p.v("v_sub_f32", vNM.sub(4 * n + r), 0, vMNEW.sub(n))
                for kt in range(2):
                    for r in range(4):
                        s = S_(nxt, kt, n).sub(r)
                        p.v("v_sub_f32", s, s, vMNEW.sub(n))
        else:
            p.v("v_max3_f32", vD, vMNEW.sub(0), vMNEW.sub(1), vMNEW.sub(2))
            p.v("v_max3_f32", vD, vD, vMNEW.sub(3), vMNEW.sub(4))
            p.add(Ins(f"v_cmp_gt_f32 {sCMP}, {vD}, {sTHR}", 'valu', [vD, sTHR], [sCMP]))
            p.nop(3)
            p.s("s_cmp_lg_u64", None, sCMP, 0)
            k = len(rescale_sites)
            rescale_sites.append((k, nxt))
            p.branch("s_cbranch_scc1", f"K1_RESC{k}")
            p.label(f"K1_RESC{k}_RET")


def rescale_block(p, k, buf):
    p.label(f"K1_RESC{k}")
    p.nop(15)
    for n in range(5):
        xlane_max(p, n)
    for n in range(5):
        m = vMNEW.sub(n)
        f = vTMP.sub(n)
        p.v("v_max_f32", m, 0, m)
        p.v("v_sub_f32", f, 0, m)
        p.v("v_exp_f32", f, f)
        for r in range(4):
            p.v("v_sub_f32", vNM.sub(4 * n + r), vNM.sub(4 * n + r), m)
            p.v("v_mul_f32", vL.sub(4 * n + r), vL.sub(4 * n + r), f)
        for kt in range(2):
            for r in range(4):
                s = S_(buf, kt, n).sub(r)
                p.v("v_sub_f32", s, s, m)
    k2 = 0
    for T in range(8):
        for n in range(5):
            t = vP.sub((k2 % 5) * 4, 4)
            k2 += 1
            for r in range(4):
                p.v("v_accvgpr_read_b32", t.sub(r), O_(T, n).sub(r))
            for r in range(4):
                p.v("v_mul_f32", t.sub(r), t.sub(r), vTMP.sub(n))
            for r in range(4):
                p.v("v_accvgpr_write_b32", O_(T, n).sub(r), t.sub(r))
    p.nop(3)
    p.branch("s_branch", f"K1_RESC{k}_RET")


def k1_epilogue(p):
    p.comment("---- epilogue")
    p.nop(15)
    for n in range(5):
        p.v("v_rcp_f32", vTMP.sub(n), vL.sub(4 * n))
    k = 0
    for n in range(5):
        for u in range(4):
            t = V((k % 4) * 12, 12)
            k += 1
            for e in range(2):
                for r in range(4):
                    p.v("v_accvgpr_read_b32", t.sub(4 * e + r), O_(2 * u + e, n).sub(r))
            for r in range(8):
                p.v("v_mul_f32", t.sub(r), t.sub(r), vTMP.sub(n))
            for r in range(4):
                p.v("v_cvt_pk_bf16_f32", t.sub(8 + r), t.sub(2 * r), t.sub(2 * r + 1))
            p.s("s_add_u32", sT1, sW5120, (u * 10 + n) * 1024)
            p.buf_store(t.sub(8, 4), vOo, sO, sT1, 0)


def gen_k1():
    p = Prog()
    p.label(K1)
    k1_setup(p)
    stamp_setup(p)
    p.label("K1_ROUND")
    stamp(p)
    k1_round_setup(p)
    p.s("s_and_b32", sT1, sTYPE, sRND)
    p.s("s_cmp_eq_u32", None, sT1, 0)
    p.branch("s_cbranch_scc1", "K1_DOQ")
    k1_stash_load(p)
    p.branch("s_branch", "K1_QEND")
    p.label("K1_DOQ")
    p.s("s_mov_b32", sDEST, 0)
    k1_qproj(p)
    p.label("K1_QEND")
    k1_acc_init(p)
    stamp(p)
    p.ins += kfrag_reads(0)
    iteration(p, 3, do_qk=True, do_sm=False, first=True)
    p.s("s_mov_b32", sCNT, 0)
    al = os.environ.get("ALIGN", "0")
    if al != "0":
        p.add(Ins(".p2align 6", 'comment'))
        if al == "2":
            p.raw("s_nop 0", 'nop', tag=0)
    p.label("K1_LOOP")
    iteration(p, 0)

    def prev(p):
        p.s("s_cmp_lg_u32", None, sCNT, 7)
        p.branch("s_cbranch_scc1", "K1_NSV")
        for k in range(4):
            p.s("s_mov_b32", sV.sub(k), sVN.sub(k))
        p.s("s_mov_b32", sVOFF, sT0OFF)
        p.label("K1_NSV")
    iteration(p, 1, pre_v=prev)
    iteration(p, 2)
    p.s("s_cmp_eq_u32", None, sCNT, 7)
    p.branch("s_cbranch_scc1", "K1_LAST")

    def prek(p):
        p.s("s_cmp_lg_u32", None, sCNT, 6)
        p.branch("s_cbranch_scc1", "K1_NSK")
        for k in range(4):
            p.s("s_mov_b32", sK.sub(k), sKN.sub(k))
        p.s("s_mov_b32", sKOFF, sT0OFF)
        p.label("K1_NSK")
    iteration(p, 3, pre_k=prek)
    p.s("s_add_u32", sCNT, sCNT, 1)
    p.branch("s_branch", "K1_LOOP")
    p.label("K1_LAST")
    def hk(p):
        p.s("s_mov_b32", sT3, 1)
        k1_xw_setup(p, sT3)
        k1_touch(p)
        if WOMID:
            p.s("s_cmp_lg_u32", None, sRND, 0)
            p.branch("s_cbranch_scc1", "K1_WM1")
            p.s("s_cmp_ge_u32", None, sWG, 256)
            p.s("s_cselect_b32", sO.sub(0), S(sPB + 8), S(sPA + 8))
            p.s("s_cselect_b32", sO.sub(1), S(sPB + 9), S(sPA + 9))
            p.s("s_bfe_u32", sT3, sWG, (3 << 16) | 5)
            p.s("s_and_b32", sT2, sWG, 31)
            p.s("s_lshl_b32", sT2, sT2, 17)
            p.s("s_lshl_b32", sT1, sT3, 7)
            p.s("s_add_u32", sT2, sT2, sT1)
            p.s("s_add_u32", sWOD.sub(0), sO.sub(0), sT2)
            p.s("s_addc_u32", sWOD.sub(1), sO.sub(1), 0)
            p.s("s_and_b32", sWOD.sub(1), sWOD.sub(1), 0xffff)
            p.s("s_sub_u32", sWOD.sub(2), 128 * 1024, sT1)
            p.s("s_mov_b32", sWOD.sub(3), 0x20000)
            p.s("s_lshr_b32", sT2, sW4096, 6)
            p.v("v_add_u32", V(36), sT2, vLANE)
            for m in range(8):
                p.v("v_add_u32", V(37), 128 * m, V(36))
                p.v("v_lshrrev_b32", V(38), 3, V(37))
                p.v("v_bfe_u32", V(39), V(38), 1, 1)
                p.v("v_lshlrev_b32", V(39), 2, V(39))
                p.v("v_and_b32", V(37), 7, V(37))
                p.v("v_xor_b32", V(39), V(39), V(37))
                p.v("v_lshlrev_b32", V(39), 4, V(39))
                p.v("v_lshl_add_u32", V(37), V(38), 10, V(39))
                p.buf_load(V(4 * m, 4), V(37), sWOD, 0, 0, flags=" nt")
            p.label("K1_WM1")
    iteration(p, 3, do_qk=False, do_sm=True, kdma=False, vdma=False, hook=hk)
    if WOMID:
        p.s("s_cmp_lg_u32", None, sRND, 0)
        p.branch("s_cbranch_scc1", "K1_WM2")
        p.s("s_lshl_b32", sT2, sWG, 14)
        p.s("s_add_u32", sT2, sT2, WS_WO)
        p.s("s_add_u32", sWOD.sub(0), sWS.sub(0), sT2)
        p.s("s_addc_u32", sWOD.sub(1), sWS.sub(1), 0)
        p.s("s_and_b32", sWOD.sub(1), sWOD.sub(1), 0xffff)
        p.s("s_mov_b32", sWOD.sub(2), 16384)
        p.s("s_mov_b32", sWOD.sub(3), 0x20000)
        p.wait(vm=0)
        p.s("s_lshr_b32", sT2, sW4096, 2)
        for m in range(8):
            p.s("s_add_u32", sT1, sT2, 2048 * m)
            p.buf_store(V(4 * m, 4), vOo, sWOD, sT1, 0)
        p.nop(3)
        p.label("K1_WM2")
    stamp(p)
    k1_epilogue(p)
    stamp(p)
    p.s("s_mov_b32", sKN.sub(2), 0)
    p.s("s_mov_b32", sVN.sub(2), 0)
    p.s("s_add_u32", sRND, sRND, 1)
    p.s("s_cmp_lt_u32", None, sRND, 2)
    p.branch("s_cbranch_scc1", "K1_ROUND")
    p.label("K1_END")
    p.raw("s_endpgm", 'end')
    for k, buf in rescale_sites:
        rescale_block(p, k, buf)
    ins = insert_waits(p.ins)
    ins = fix_hazards(ins)
    return ins


def gen_k2():
    p = Prog()
    p.label(K2)
    sP = S(4, 2)
    sPb = S(6, 2)
    sOUT = S(8, 2)
    sWSP = S(10, 2)
    sWO = S(12, 4)
    sOO = S(16, 4)
    sOT = S(20, 4)
    sWV = S(24)
    sBUF = S(25)
    sKO = S(26)
    t1, t2, t3, t4 = S(27), S(28), S(29), S(30)
    sNT = S(31)
    sBLK = S(32)
    sBB = S(33)
    vLn = V(0)
    vBo = V(2, 3)
    vAd = V(12)
    vAa = V(14, 2)
    vAf = [V(16, 16), V(32, 16)]
    NB = int(os.environ.get("K2_NB", "5"))
    vBf = [V(48 + 40 * k, 40) for k in range(NB)]
    vT_ = V(208, 12)
    vSt = V(100, 10)
    vSt0 = V(248)
    vRa = V(249)
    vWa_ = V(250)
    vTch = V(252, 2)
    aC = A(0, 160)

    def C_(T, n):
        return aC.sub(T * 40 + n * 4, 4)

    p.s("s_cmp_ge_u32", None, sWG, 256)
    p.branch("s_cbranch_scc1", "K2_END")
    p.raw("s_load_dwordx2 s[4:5], s[0:1], 32", wr=['s4', 's5'])
    p.raw("s_load_dwordx2 s[6:7], s[0:1], 72", wr=['s6', 's7'])
    p.raw("s_load_dwordx2 s[8:9], s[0:1], 80", wr=['s8', 's9'])
    p.raw("s_load_dwordx2 s[10:11], s[0:1], 96", wr=['s10', 's11'])
    p.v("v_lshrrev_b32", vT_.sub(0), 6, V(0))
    p.v("v_and_b32", vLn, 63, V(0))
    p.nop(1)
    p.add(Ins(f"v_readfirstlane_b32 {sWV}, {vT_.sub(0)}", 'valu', [vT_.sub(0)], [sWV]))
    p.nop(3)
    p.s("s_and_b32", t1, sWG, 7)
    p.s("s_lshr_b32", t2, sWG, 3)
    p.s("s_and_b32", sNT, t2, 7)
    p.s("s_lshr_b32", t2, t2, 3)
    p.s("s_lshl_b32", t1, t1, 2)
    p.s("s_add_u32", t1, t1, t2)
    p.s("s_lshr_b32", sBLK, t1, 4)
    p.s("s_and_b32", sBB, t1, 15)
    p.s("s_lshl_b32", sBUF, sWV, 14)
    i_, g_, rp, cc, t5, t6 = (vT_.sub(k) for k in range(1, 7))
    p.v("v_and_b32", i_, 15, vLn)
    p.v("v_lshrrev_b32", g_, 4, vLn)
    p.v("v_bfe_u32", rp, vLn, 2, 2)
    p.v("v_and_b32", cc, 3, vLn)
    p.v("v_lshlrev_b32", t6, 4, vLn)
    for k in range(3):
        p.v("v_add_u32", vBo.sub(k), 4096 * k, t6)
    p.v("v_lshlrev_b32", vAd, 4, vLn)
    for u in range(2):
        p.v("v_lshrrev_b32", t5, 1, rp)
        p.v("v_xor_b32", t5, u, t5)
        p.v("v_lshl_add_u32", t5, t5, 2, cc)
        p.v("v_lshlrev_b32", t5, 4, t5)
        p.v("v_lshl_add_u32", t6, g_, 3, rp)
        p.v("v_lshl_add_u32", t6, t6, 7, t5)
        p.v("v_add_u32", vAa.sub(u), sBUF, t6)
    p.v("v_lshlrev_b32", t6, 4, g_)
    p.v("v_lshl_add_u32", vSt0, i_, 11, t6)
    p.v("v_lshlrev_b32", vRa, 4, vLn)
    p.wait(lgkm=0)
    p.s("s_lshl_b32", t1, sNT, 7)
    p.s("s_lshl_b32", t2, sBLK, 3)
    p.s("s_add_u32", t2, t2, sNT)
    p.s("s_lshl_b32", t2, t2, 7)
    p.s("s_lshl_b32", t3, sWV, 5)
    p.s("s_add_u32", t2, t2, t3)
    p.s("s_lshl_b32", t2, t2, 12)
    p.s("s_add_u32", t2, t2, WS_WO)
    p.s("s_add_u32", sWO.sub(0), sWSP.sub(0), t2)
    p.s("s_addc_u32", sWO.sub(1), sWSP.sub(1), 0)
    p.s("s_and_b32", sWO.sub(1), sWO.sub(1), 0xffff)
    p.s("s_mov_b32", sWO.sub(2), 32 * 4096)
    p.s("s_mov_b32", sWO.sub(3), 0x20000)
    p.s("s_lshl_b32", t2, sBLK, 4)
    p.s("s_add_u32", t2, t2, sBB)
    p.s("s_lshl_b32", t2, t2, 5)
    p.s("s_lshl_b32", t3, sWV, 3)
    p.s("s_add_u32", t2, t2, t3)
    p.s("s_mul_i32", t2, t2, 40960)
    p.s("s_add_u32", sOO.sub(0), sWSP.sub(0), t2)
    p.s("s_addc_u32", sOO.sub(1), sWSP.sub(1), 0)
    p.s("s_and_b32", sOO.sub(1), sOO.sub(1), 0xffff)
    p.s("s_mov_b32", sOO.sub(2), 8 * 40960)
    p.s("s_mov_b32", sOO.sub(3), 0x20000)
    p.s("s_mul_i32", t2, sBB, 160 * 2048)
    p.s("s_lshl_b32", t3, sBLK, 10)
    p.s("s_add_u32", t3, t3, t1)
    p.s("s_add_u32", t2, t2, t3)
    p.s("s_add_u32", sOT.sub(0), sOUT.sub(0), t2)
    p.s("s_addc_u32", sOT.sub(1), sOUT.sub(1), 0)
    p.s("s_and_b32", sOT.sub(1), sOT.sub(1), 0xffff)
    p.s("s_sub_u32", sOT.sub(2), 160 * 2048, t3)
    p.s("s_mov_b32", sOT.sub(3), 0x20000)
    p.s("s_lshl_b32", sKO, sWV, 20)

    def a_dma(ks):
        gs = []
        for j in range(4):
            q = sub_prog()
            if j == 0:
                q.s("s_add_u32", "m0", sBUF, (ks % 4) * 4096)
                q.s("s_mov_b32", t4, ks * 4096)
            q.buf_dma(vAd, sWO, t4, j * 1024, tag=('A', ks))
            gs.append(q.ins)
        return gs

    def b_load(ks):
        gs = []
        for n in range(10):
            q = sub_prog()
            q.s("s_mov_b32", t3, ks * 10240)
            q.buf_load(vBf[ks % NB].sub(4 * n, 4), vBo.sub(n // 4), sOO, t3, (n % 4) * 1024, tag=('B', ks))
            gs.append(q.ins)
        return gs

    def tr_list(ks):
        q = sub_prog()
        for T in range(4):
            u, e = T // 2, T % 2
            for e2 in range(2):
                q.ds_read("ds_read_b64_tr_b16", vAf[ks % 2].sub(T * 4 + 2 * e2, 2), vAa.sub(u),
                          (ks % 4) * 4096 + e2 * 512 + 8 * e)
        return q.ins

    p.v("v_lshlrev_b32", vTch.sub(0), 7, vLn)
    p.v("v_lshlrev_b32", vTch.sub(1), 10, vLn)
    for ks in range(4):
        for g in a_dma(ks):
            p.ins += g
    for ks in range(NB - 1):
        for g in b_load(ks):
            p.ins += g
    for k in range(16 if os.environ.get("TOUCH2", "0") == "1" else 0):
        p.s("s_add_u32", t3, sKO, k * 65536)
        p.buf_load(V(255), vTch.sub(1), sWO, t3, 0)
    for k in range(40 if os.environ.get("TOUCH2", "0") == "1" else 0):
        p.s("s_mov_b32", t3, k * 8192)
        p.buf_load(V(255), vTch.sub(0), sOO, t3, 0)
    p.wait_tag(('A', 0))
    p.ins += tr_list(0)
    for ks in range(32):
        if ks + 1 < 32:
            p.wait_tag(('A', ks + 1))
        p.wait(lgkm=0)
        groups = []
        if ks + 4 < 32:
            groups += a_dma(ks + 4)
        if ks + NB - 1 < 32:
            groups += b_load(ks + NB - 1)
        m = sub_prog()
        for n in range(10):
            for T in range(4):
                m.mfma16(C_(T, n), vAf[ks % 2].sub(T * 4, 4), vBf[ks % NB].sub(4 * n, 4),
                         C_(T, n) if ks > 0 else 0)
        tr = tr_list(ks + 1) if ks + 1 < 32 else []
        nm = len(m.ins)
        pos = {}
        for k, g in enumerate(groups):
            pos.setdefault(1 + (k * (nm - 3)) // max(1, len(groups)), []).extend(g)
        for k, t in enumerate(tr):
            pos.setdefault(2 + k * 2, []).append(t)
        for k, mi in enumerate(m.ins):
            p.ins.append(mi)
            p.ins += pos.get(k, [])
    p.nop(15)
    p.wait(vm=0, lgkm=0)
    p.barrier()
    for n in range(10):
        p.v("v_add_u32", vSt.sub(n), n * 32768, vSt0)
    for dT in range(1, 4):
        slot = 3 - dT
        p.label(f"K2_W{dT}")
        p.s("s_add_u32", t1, sWV, dT)
        p.s("s_and_b32", t1, t1, 3)
        p.s("s_mul_i32", t2, t1, 30720)
        p.s("s_add_u32", t2, t2, slot * 10240)
        p.v("v_add_u32", vWa_, t2, vRa)
        for T in range(4):
            p.s("s_cmp_lg_u32", None, t1, T)
            p.branch("s_cbranch_scc1", f"K2_W{dT}_{T}")
            for n in range(10):
                p.ds_write("ds_write_b128", vWa_, C_(T, n), n * 1024)
            p.label(f"K2_W{dT}_{T}")
    p.wait(lgkm=0)
    p.barrier()
    p.s("s_mul_i32", t2, sWV, 30720)
    p.v("v_add_u32", vWa_, t2, vRa)
    for T in range(4):
        p.s("s_cmp_lg_u32", None, sWV, T)
        p.branch("s_cbranch_scc1", f"K2_R{T}")
        u, e = T // 2, T % 2
        for n in range(10):
            t = V(48 + (n % 2) * 20, 20)
            for sl in range(3):
                p.ds_read("ds_read_b128", t.sub(4 * sl, 4), vWa_, sl * 10240 + n * 1024)
            for r in range(4):
                p.v("v_accvgpr_read_b32", t.sub(12 + r), C_(T, n).sub(r))
            for sl in range(3):
                for r in range(4):
                    p.v("v_add_f32", t.sub(12 + r), t.sub(12 + r), t.sub(4 * sl + r))
            p.v("v_cvt_pk_bf16_f32", t.sub(16), t.sub(12), t.sub(13))
            p.v("v_cvt_pk_bf16_f32", t.sub(17), t.sub(14), t.sub(15))
            p.buf_store(t.sub(16, 2), vSt.sub(n), sOT, 0, u * 64 + e * 8)
        p.wait(vm=0, lgkm=0)
        p.label(f"K2_R{T}")
    p.label("K2_END")
    p.raw("s_endpgm", 'end')
    ins = insert_waits(p.ins)
    ins = fix_hazards(ins)
    return ins


WS_XF = 64 << 20
WS_WQ = 80 << 20
WS_WO = 96 << 20
K0 = "prep_kernel"
K0_GRID = 320 + (512 if WQIMG else 0) + (512 if (WOIMG and not WOIN and not WOMID) else 0)


def gen_k0():
    p = Prog()
    p.label(K0)
    sSrc = S(8, 4)
    sDst = S(12, 4)
    t1, t2, t3, t4, t5s = S(16), S(17), S(18), S(19), S(20)
    sBl = S(21)
    sWSp = S(22, 2)
    vA = V(1)
    vK = V(5)
    a, b_, c = V(6), V(7), V(8)
    vD0 = V(9)
    p.s("s_cmp_ge_u32", None, sWG, K0_GRID)
    p.branch("s_cbranch_scc1", "K0_END")
    p.raw("s_load_dwordx2 s[22:23], s[0:1], 96", wr=['s22', 's23'])
    p.s("s_cmp_ge_u32", None, sWG, 320)
    p.branch("s_cbranch_scc1", "K0_W")
    p.s("s_cmp_ge_u32", None, sWG, 160)
    p.s("s_cselect_b32", sBl, 1, 0)
    p.s("s_mul_i32", t1, sBl, 160)
    p.s("s_sub_u32", t1, sWG, t1)
    p.s("s_mul_i32", t2, sBl, 40)
    p.s("s_add_u32", S(24), S(0), t2)
    p.s("s_addc_u32", S(25), S(1), 0)
    p.raw("s_load_dwordx2 s[4:5], s[24:25], 0", wr=['s4', 's5'])
    p.wait(lgkm=0)
    p.s("s_lshl_b32", t2, t1, 14)
    p.s("s_add_u32", sSrc.sub(0), S(4), t2)
    p.s("s_addc_u32", sSrc.sub(1), S(5), 0)
    p.s("s_and_b32", sSrc.sub(1), sSrc.sub(1), 0xffff)
    p.s("s_mov_b32", sSrc.sub(2), 16384)
    p.s("s_mov_b32", sSrc.sub(3), 0x20000)
    p.s("s_lshl_b32", t2, sWG, 14)
    p.s("s_add_u32", t2, t2, WS_XF)
    p.s("s_add_u32", sDst.sub(0), sWSp.sub(0), t2)
    p.s("s_addc_u32", sDst.sub(1), sWSp.sub(1), 0)
    p.s("s_and_b32", sDst.sub(1), sDst.sub(1), 0xffff)
    p.s("s_mov_b32", sDst.sub(2), 16384)
    p.s("s_mov_b32", sDst.sub(3), 0x20000)
    for m in range(4):
        p.v("v_add_u32", vK, 256 * m, V(0))
        p.v("v_and_b32", a, 15, vK)
        p.v("v_lshlrev_b32", a, 10, a)
        p.v("v_lshrrev_b32", b_, 6, vK)
        p.v("v_lshl_add_u32", a, b_, 6, a)
        p.v("v_bfe_u32", b_, vK, 4, 2)
        p.v("v_lshl_add_u32", V(1 + m), b_, 4, a)
    p.branch("s_branch", "K0_COPY")
    p.label("K0_W")
    p.s("s_sub_u32", t1, sWG, 320 if WQIMG else 320 - 512)
    p.s("s_cmp_ge_u32", None, t1, 512)
    p.branch("s_cbranch_scc1", "K0_WO")
    p.s("s_lshr_b32", sBl, t1, 8)
    p.s("s_mul_i32", t2, sBl, 40)
    p.s("s_add_u32", S(24), S(0), t2)
    p.s("s_addc_u32", S(25), S(1), 0)
    p.raw("s_load_dwordx2 s[4:5], s[24:25], 24", wr=['s4', 's5'])
    p.wait(lgkm=0)
    p.s("s_bfe_u32", t3, t1, (5 << 16) | 3)
    p.s("s_and_b32", t4, t1, 7)
    p.s("s_lshl_b32", t2, t4, 19)
    p.s("s_lshl_b32", t5s, t3, 8)
    p.s("s_add_u32", t2, t2, t5s)
    p.s("s_add_u32", sSrc.sub(0), S(4), t2)
    p.s("s_addc_u32", sSrc.sub(1), S(5), 0)
    p.s("s_and_b32", sSrc.sub(1), sSrc.sub(1), 0xffff)
    p.s("s_sub_u32", sSrc.sub(2), 64 * 8192, t5s)
    p.s("s_mov_b32", sSrc.sub(3), 0x20000)
    p.s("s_lshl_b32", t2, t1, 14)
    p.s("s_add_u32", t2, t2, WS_WQ)
    p.s("s_add_u32", sDst.sub(0), sWSp.sub(0), t2)
    p.s("s_addc_u32", sDst.sub(1), sWSp.sub(1), 0)
    p.s("s_and_b32", sDst.sub(1), sDst.sub(1), 0xffff)
    p.s("s_mov_b32", sDst.sub(2), 16384)
    p.s("s_mov_b32", sDst.sub(3), 0x20000)
    for m in range(4):
        p.v("v_add_u32", vK, 256 * m, V(0))
        p.v("v_lshrrev_b32", a, 4, vK)
        p.v("v_and_b32", b_, 3, a)
        p.v("v_lshlrev_b32", b_, 2, b_)
        p.v("v_and_b32", c, 15, vK)
        p.v("v_xor_b32", b_, b_, c)
        p.v("v_lshlrev_b32", b_, 4, b_)
        p.v("v_lshl_add_u32", V(1 + m), a, 13, b_)
    p.branch("s_branch", "K0_COPY")
    p.label("K0_WO")
    p.s("s_sub_u32", t1, t1, 512)
    p.s("s_lshr_b32", sBl, t1, 8)
    p.s("s_mul_i32", t2, sBl, 40)
    p.s("s_add_u32", S(24), S(0), t2)
    p.s("s_addc_u32", S(25), S(1), 0)
    p.raw("s_load_dwordx2 s[4:5], s[24:25], 32", wr=['s4', 's5'])
    p.wait(lgkm=0)
    p.s("s_bfe_u32", t3, t1, (3 << 16) | 5)
    p.s("s_and_b32", t4, t1, 31)
    p.s("s_lshl_b32", t2, t4, 17)
    p.s("s_lshl_b32", t5s, t3, 7)
    p.s("s_add_u32", t2, t2, t5s)
    p.s("s_add_u32", sSrc.sub(0), S(4), t2)
    p.s("s_addc_u32", sSrc.sub(1), S(5), 0)
    p.s("s_and_b32", sSrc.sub(1), sSrc.sub(1), 0xffff)
    p.s("s_sub_u32", sSrc.sub(2), 128 * 1024, t5s)
    p.s("s_mov_b32", sSrc.sub(3), 0x20000)
    p.s("s_lshl_b32", t2, t1, 14)
    p.s("s_add_u32", t2, t2, WS_WO)
    p.s("s_add_u32", sDst.sub(0), sWSp.sub(0), t2)
    p.s("s_addc_u32", sDst.sub(1), sWSp.sub(1), 0)
    p.s("s_and_b32", sDst.sub(1), sDst.sub(1), 0xffff)
    p.s("s_mov_b32", sDst.sub(2), 16384)
    p.s("s_mov_b32", sDst.sub(3), 0x20000)
    for m in range(4):
        p.v("v_add_u32", vK, 256 * m, V(0))
        p.v("v_lshrrev_b32", a, 3, vK)
        p.v("v_bfe_u32", b_, a, 1, 1)
        p.v("v_lshlrev_b32", b_, 2, b_)
        p.v("v_and_b32", c, 7, vK)
        p.v("v_xor_b32", b_, b_, c)
        p.v("v_lshlrev_b32", b_, 4, b_)
        p.v("v_lshl_add_u32", V(1 + m), a, 10, b_)
    p.label("K0_COPY")
    p.v("v_lshlrev_b32", vD0, 4, V(0))
    for m in range(4):
        p.buf_load(V(12 + 4 * m, 4), V(1 + m), sSrc, 0, 0, flags=os.environ.get("K0LD", " nt"))
    for m in range(4):
        p.s("s_mov_b32", t1, 4096 * m)
        p.buf_store(V(12 + 4 * m, 4), vD0, sDst, t1, 0, flags=os.environ.get("K0ST", ""))
    p.label("K0_END")
    p.raw("s_endpgm", 'end')
    ins = insert_waits(p.ins)
    ins = fix_hazards(ins)
    return ins


HEADER = open(os.path.join(os.path.dirname(__file__), "header.txt")).read()


def descriptor(name, vg, sg, acc):
    return f""".amdhsa_kernel {name}
  .amdhsa_next_free_vgpr {vg}
  .amdhsa_next_free_sgpr {sg}
  .amdhsa_accum_offset {acc}
  .amdhsa_group_segment_fixed_size 0
  .amdhsa_kernarg_size 104
  .amdhsa_user_sgpr_count 2
  .amdhsa_user_sgpr_kernarg_segment_ptr 1
  .amdhsa_system_sgpr_workgroup_id_x 1
.end_amdhsa_kernel
"""


def main():
    k1 = gen_k1()
    k2 = gen_k2()
    out = HEADER
    out += f"; @launch kernel={K0} grid=({K0_GRID},1,1) block=(256,1,1) lds=0\n"
    out += f"; @launch kernel={K1} grid=(512,1,1) block=(128,1,1) lds={LDS_BYTES}\n"
    out += f"; @launch kernel={K2} grid=(256,1,1) block=(256,1,1) lds=122880\n"
    out += '.amdgcn_target "amdgcn-amd-amdhsa--gfx950"\n.text\n'
    out += f".globl {K1}\n.p2align 8\n.type {K1},@function\n"
    out += render(k1)
    out += f".globl {K2}\n.p2align 8\n.type {K2},@function\n"
    out += render(k2)
    out += f".globl {K0}\n.p2align 8\n.type {K0},@function\n"
    out += render(gen_k0())
    out += '.section .rodata,"a"\n.p2align 6\n'
    out += descriptor(K1, 512, 102, 256)
    out += ".p2align 6\n"
    out += descriptor(K2, 512, 96, 256)
    out += ".p2align 6\n"
    out += descriptor(K0, 32, 32, 32)
    dst = sys.argv[1] if len(sys.argv) > 1 else os.path.join(os.path.dirname(__file__), "..", "cdna_kernels", NAME + ".s")
    open(dst, "w").write(out)
    print("wrote", dst, len(out), "bytes;", len(k1), "+", len(k2), "instructions")


if __name__ == "__main__":
    main()
```

```python
import sys, os, math
sys.path.insert(0, os.path.dirname(__file__))
from asmlib import *
from asmlib import _flat

NAME = "concat_heads__mha_block_cached__gqa_block_cached__near_ridge"
K1 = NAME + "_kernel"
K2 = "oproj_kernel"

SCALE_LOG2E = (128 ** -0.5) * math.log2(math.e)
import struct


def fbits(x):
    return struct.unpack('<I', struct.pack('<f', x))[0]


THR_RAW = 8.0 / SCALE_LOG2E

NT = os.environ.get("KV_NT", "1") == "1"
KVFLAGS = " nt" if NT else ""

sKARG = S(0, 2)
sWG = S(2)
sPA = 4
sPB = 16
sWS = S(26, 2)
sW4096 = S(30)
sRND = S(31)
sB = S(32)
sH = S(33)
sPOFF = S(34)
sT0 = S(35)
sK = S(36, 4)
sV = S(40, 4)
sKN = S(44, 4)
sVN = S(48, 4)
sW = S(52, 4)
sX = S(56, 4)
sO = S(60, 4)
sKOFF = S(64)
sVOFF = S(65)
sCNT = S(66)
sC = S(67)
sT1 = S(68)
sT2 = S(69)
sCMP = S(70, 2)
sTHR = S(72)
sWOFF = S(73)
sT3 = S(74)
sT4 = S(75)
sT0OFF = S(83)
sW5120 = S(84)
sPIDX = S(85)
sXOFF = [S(88), S(89), S(90), S(91)]
sWOD = S(92, 4)
sTYPE = S(100)
sWOFLAG = S(87)
sKVF = S(14)
sW5120x4 = S(86)
WOIN = os.environ.get('WOIN', '0') == '1'
DESYNC = os.environ.get('DESYNC', '0') == '1'
KVLATE = os.environ.get('KVLATE', '0') == '1'
WQIMG = os.environ.get('WQIMG', '1') == '1'
WOIMG = os.environ.get('WOIMG', '1') == '1'
WOMID = os.environ.get('WOMID', '0') == '1'
sDEST = S(101)
sQS = S(96, 4)
WS_QS = 112 << 20

vS = [V(0, 40), V(40, 40)]
vP = V(80, 20)
vKf = V(100, 32)
vVf = V(132, 32)
vNM = V(164, 20)
vL = V(184, 20)
vONE = V(204, 4)
vMNEW = V(208, 5)
vTMP = V(213, 5)
vKa = V(218, 4)
vVa = V(222, 4)
vWa = V(226, 4)
vKd = V(230, 4)
vVd = V(234)
vWd = V(235)
vXo = V(236, 5)
vOo = V(241)
vD = V(242)
vLANE = V(243)
vT = V(244, 8)
vTW = V(252)
vTX = V(253)
vDUM = V(255)
aO = A(0, 160)
aQ = A(160, 80)

LDS_K = 0
LDS_V = 32768
LDS_W = 49152
LDS_BYTES = 81920


def S_(buf, kt, n):
    return vS[buf].sub(kt * 20 + n * 4, 4)


def O_(T, n):
    return aO.sub(T * 20 + n * 4, 4)


def Q_(n, ds):
    return aQ.sub(n * 16 + ds * 4, 4)


def Kf_(kt, ds):
    return vKf.sub((kt * 4 + ds) * 4, 4)


def Vf_(T):
    return vVf.sub(T * 4, 4)


def sub_prog():
    return Prog()


def k1_setup(p):
    p.comment("---- setup")
    p.s("s_cmp_ge_u32", None, sWG, 512)
    p.branch("s_cbranch_scc1", "K1_END")
    p.raw(f"s_load_dwordx8 s[4:11], s[0:1], 0", wr=regs('s', 4, 8))
    p.raw(f"s_load_dwordx2 s[12:13], s[0:1], 32", wr=regs('s', 12, 2))
    p.raw(f"s_load_dwordx8 s[16:23], s[0:1], 40", wr=regs('s', 16, 8))
    p.raw(f"s_load_dwordx2 s[24:25], s[0:1], 72", wr=regs('s', 24, 2))
    p.raw(f"s_load_dwordx2 s[26:27], s[0:1], 96", wr=regs('s', 26, 2))
    p.v("v_and_b32", vLANE, 63, V(0))
    p.v("v_lshrrev_b32", vT.sub(0), 6, V(0))
    p.nop(1)
    p.add(Ins(f"v_readfirstlane_b32 {sT0}, {vT.sub(0)}", 'valu', [vT.sub(0)], [sT0]))
    p.nop(3)
    p.s("s_lshl_b32", sW4096, sT0, 12)
    p.s("s_mul_i32", sT4, sT0, 80)
    p.s("s_mul_i32", sW5120, sT0, 5120)
    p.s("s_and_b32", sT1, sWG, 7)
    p.s("s_lshr_b32", sT2, sWG, 3)
    p.s("s_lshl_b32", sT3, sT1, 2)
    p.s("s_add_u32", sT3, sT3, sT2)
    p.s("s_and_b32", sT3, sT3, 31)
    p.s("s_lshl_b32", sT3, sT3, 13)
    p.s("s_add_u32", sT0OFF, sT3, sW4096)
    p.s("s_lshr_b32", sB, sT2, 2)
    p.s("s_and_b32", sT2, sT2, 3)
    p.s("s_lshl_b32", sT1, sT1, 2)
    p.s("s_add_u32", sH, sT1, sT2)
    p.s("s_lshl_b32", sT1, sB, 5)
    p.s("s_add_u32", sPIDX, sT1, sH)
    p.s("s_lshl_b32", sPOFF, sPIDX, 18)
    p.s("s_mov_b32", sC, hex(fbits(SCALE_LOG2E)))
    p.s("s_mov_b32", sTHR, hex(fbits(8.0)))
    i_ = vT.sub(1)
    g_ = vT.sub(2)
    rp = vT.sub(3)
    cc = vT.sub(4)
    t5 = vT.sub(5)
    t6 = vT.sub(6)
    p.v("v_and_b32", i_, 15, vLANE)
    p.v("v_lshrrev_b32", g_, 4, vLANE)
    p.v("v_bfe_u32", rp, vLANE, 2, 2)
    p.v("v_and_b32", cc, 3, vLANE)
    for k in range(4):
        p.v("v_mov_b32", vONE.sub(k), "0x3f803f80")
    for ds in range(4):
        p.v("v_add_u32", t5, 4 * ds, g_)
        p.v("v_xor_b32", t5, t5, i_)
        p.v("v_lshlrev_b32", t5, 4, t5)
        p.v("v_lshl_add_u32", vKa.sub(ds), i_, 8, t5)
    for u in range(4):
        p.v("v_xor_b32", t5, u, rp)
        p.v("v_lshl_add_u32", t5, t5, 2, cc)
        p.v("v_lshlrev_b32", t5, 4, t5)
        p.v("v_lshl_add_u32", t6, g_, 2, rp)
        p.v("v_lshl_add_u32", vVa.sub(u), t6, 8, t5)
        p.v("v_lshl_add_u32", t6, g_, 3, rp)
        p.v("v_lshl_add_u32", t6, t6, 8, t5)
        p.v("v_add_u32", vWa.sub(u), LDS_W, t6)
    for j in range(4):
        p.v("v_add_u32", t5, 4 * j, g_)
        p.v("v_xor_b32", t5, t5, i_)
        p.v("v_lshlrev_b32", t5, 4, t5)
        p.v("v_lshl_add_u32", vKd.sub(j), g_, 8, t5)
    p.v("v_lshlrev_b32", t5, 2, g_)
    p.v("v_xor_b32", t5, t5, i_)
    p.v("v_lshlrev_b32", t5, 4, t5)
    p.v("v_lshl_add_u32", vVd, g_, 8, t5)
    p.v("v_lshl_add_u32", vWd, g_, 13, t5)
    p.v("v_lshlrev_b32", vOo, 4, vLANE)
    p.s("s_mul_i32", sT1, sT0, 5 * 16384)
    for n in range(5):
        p.v("v_add_u32", t5, sT1, vOo)
        p.v("v_add_u32", vXo.sub(n), n * 16384, t5)
    p.v("v_lshlrev_b32", vTX, 7, vLANE)
    p.v("v_lshrrev_b32", t5, 1, vLANE)
    p.v("v_and_b32", t6, 1, vLANE)
    p.v("v_lshlrev_b32", t6, 7, t6)
    p.v("v_lshl_add_u32", vTW, t5, 13, t6)
    p.wait(lgkm=0)
    for srd, pbase in ((sK, sPA + 2), (sV, sPA + 4), (sKN, sPB + 2), (sVN, sPB + 4)):
        p.s("s_add_u32", srd.sub(0), S(pbase), sPOFF)
        p.s("s_addc_u32", srd.sub(1), S(pbase + 1), 0)
        p.s("s_and_b32", srd.sub(1), srd.sub(1), 0xffff)
        p.s("s_mov_b32", srd.sub(2), 262144)
        p.s("s_mov_b32", srd.sub(3), 0x20000)
    p.s("s_mov_b32", sRND, 0)
    if not KVLATE:
        kv_prefill(p)
    k1_setup_tail(p, i_, g_, t5, t6)


def kv_prefill(p):
    def kd(slot, tile):
        p.s("s_add_u32", "m0", sW4096, LDS_K + slot * 8192)
        p.s("s_add_u32", sKOFF, sT0OFF, tile * 8192)
        p.s("s_and_b32", sKOFF, sKOFF, 0x3ffff)
        for j in range(4):
            p.buf_dma(vKd.sub(j), sK, sKOFF, j * 1024, flags=KVFLAGS)
    def vd(slot, tile):
        p.s("s_add_u32", "m0", sW4096, LDS_V + slot * 8192)
        p.s("s_add_u32", sVOFF, sT0OFF, tile * 8192)
        p.s("s_and_b32", sVOFF, sVOFF, 0x3ffff)
        for j in range(4):
            p.buf_dma(vVd, sV, sVOFF, j * 1024, flags=KVFLAGS)
    kd(0, 0); kd(1, 1); kd(2, 2); vd(0, 0); kd(3, 3); vd(1, 1)


def k1_setup_tail(p, i_, g_, t5, t6):
    p.s("s_lshr_b32", sT1, sWG, 3)
    p.s("s_lshr_b32", sT2, sT1, 5)
    p.s("s_xor_b32", sT1, sT1, sT2)
    p.s("s_and_b32", sTYPE, sT1, 1 if DESYNC else 0)
    p.s("s_mov_b32", sDEST, 0)
    p.s("s_mov_b32", sWOFLAG, 0)
    p.s("s_mul_i32", sW5120x4, sT0, 20480)
    p.s("s_mul_i32", sT1, sWG, 40960)
    p.s("s_add_u32", sT1, sT1, WS_QS)
    p.s("s_add_u32", sQS.sub(0), sWS.sub(0), sT1)
    p.s("s_addc_u32", sQS.sub(1), sWS.sub(1), 0)
    p.s("s_and_b32", sQS.sub(1), sQS.sub(1), 0xffff)
    p.s("s_mov_b32", sQS.sub(2), 40960)
    p.s("s_mov_b32", sQS.sub(3), 0x20000)
    k1_xw_setup(p, sRND)
    k1_touch(p)
    p.s("s_mov_b32", sKVF, 0)
    if WOIN:
        p.s("s_cmp_ge_u32", None, sWG, 256)
        p.s("s_cselect_b32", sO.sub(0), S(sPB + 8), S(sPA + 8))
        p.s("s_cselect_b32", sO.sub(1), S(sPB + 9), S(sPA + 9))
        p.s("s_bfe_u32", sT3, sWG, (3 << 16) | 5)
        p.s("s_and_b32", sT2, sWG, 31)
        p.s("s_lshl_b32", sT2, sT2, 17)
        p.s("s_lshl_b32", sT1, sT3, 7)
        p.s("s_add_u32", sT2, sT2, sT1)
        p.s("s_add_u32", sO.sub(0), sO.sub(0), sT2)
        p.s("s_addc_u32", sO.sub(1), sO.sub(1), 0)
        p.s("s_and_b32", sO.sub(1), sO.sub(1), 0xffff)
        p.s("s_sub_u32", sO.sub(2), 128 * 1024, sT1)
        p.s("s_mov_b32", sO.sub(3), 0x20000)
        p.s("s_lshl_b32", sT2, sWG, 14)
        p.s("s_add_u32", sT2, sT2, WS_WO)
        p.s("s_add_u32", sWOD.sub(0), sWS.sub(0), sT2)
        p.s("s_addc_u32", sWOD.sub(1), sWS.sub(1), 0)
        p.s("s_and_b32", sWOD.sub(1), sWOD.sub(1), 0xffff)
        p.s("s_mov_b32", sWOD.sub(2), 16384)
        p.s("s_mov_b32", sWOD.sub(3), 0x20000)
        for m in range(8):
            p.v("v_add_u32", t5, 128 * m, V(0))
            p.v("v_lshrrev_b32", t6, 3, t5)
            p.v("v_bfe_u32", i_, t6, 1, 1)
            p.v("v_lshlrev_b32", i_, 2, i_)
            p.v("v_and_b32", g_, 7, t5)
            p.v("v_xor_b32", i_, i_, g_)
            p.v("v_lshlrev_b32", i_, 4, i_)
            p.v("v_lshl_add_u32", t5, t6, 10, i_)
            p.buf_load(V(164 + 4 * m, 4), t5, sO, 0, 0, flags=" nt")


def k1_xw_setup(p, rnd_reg):
    p.s("s_lshl_b32", sT1, rnd_reg, 4)
    p.s("s_add_u32", sT1, sT1, sB)
    p.s("s_mul_i32", sT1, sT1, 163840)
    p.s("s_add_u32", sT1, sT1, WS_XF)
    p.s("s_add_u32", sX.sub(0), sWS.sub(0), sT1)
    p.s("s_addc_u32", sX.sub(1), sWS.sub(1), 0)
    p.s("s_and_b32", sX.sub(1), sX.sub(1), 0xffff)
    p.s("s_mov_b32", sX.sub(2), 163840)
    p.s("s_mov_b32", sX.sub(3), 0x20000)
    if not WQIMG:
        p.s("s_cmp_eq_u32", None, rnd_reg, 0)
        p.s("s_cselect_b32", sW.sub(0), S(sPA + 6), S(sPB + 6))
        p.s("s_cselect_b32", sW.sub(1), S(sPA + 7), S(sPB + 7))
        p.s("s_lshl_b32", sT1, sH, 8)
        p.s("s_add_u32", sW.sub(0), sW.sub(0), sT1)
        p.s("s_addc_u32", sW.sub(1), sW.sub(1), 0)
        p.s("s_and_b32", sW.sub(1), sW.sub(1), 0xffff)
        p.s("s_sub_u32", sW.sub(2), 512 * 8192, sT1)
        p.s("s_mov_b32", sW.sub(3), 0x20000)
        return
    p.s("s_lshl_b32", sT1, rnd_reg, 5)
    p.s("s_add_u32", sT1, sT1, sH)
    p.s("s_lshl_b32", sT1, sT1, 17)
    p.s("s_add_u32", sT1, sT1, WS_WQ)
    p.s("s_add_u32", sW.sub(0), sWS.sub(0), sT1)
    p.s("s_addc_u32", sW.sub(1), sWS.sub(1), 0)
    p.s("s_and_b32", sW.sub(1), sW.sub(1), 0xffff)
    p.s("s_mov_b32", sW.sub(2), 131072)
    p.s("s_mov_b32", sW.sub(3), 0x20000)


def k1_touch(p):
    if os.environ.get("TOUCH", "0") == "0":
        return
    p.s("s_lshl_b32", sT1, sW4096, 9)
    for k in range(8):
        p.s("s_add_u32", sT2, sT1, 32 * k * 8192)
        p.buf_load(vDUM, vTW, sW, sT2, 0)
    p.s("s_lshl_b32", sT1, sT4, 10)
    for k in range(10):
        p.s("s_add_u32", sT2, sT1, k * 8192)
        p.buf_load(vDUM, vTX, sX, sT2, 0)


def k1_round_setup(p):
    p.comment("---- round setup")
    p.s("s_lshl_b32", sT2, sRND, 9)
    p.s("s_add_u32", sT2, sT2, sPIDX)
    p.s("s_mul_i32", sT2, sT2, 40960)
    p.s("s_add_u32", sO.sub(0), sWS.sub(0), sT2)
    p.s("s_addc_u32", sO.sub(1), sWS.sub(1), 0)
    p.s("s_and_b32", sO.sub(1), sO.sub(1), 0xffff)
    p.s("s_mov_b32", sO.sub(2), 40960)
    p.s("s_mov_b32", sO.sub(3), 0x20000)
    p.s("s_add_u32", sKOFF, sT0OFF, 4 * 8192)
    p.s("s_and_b32", sKOFF, sKOFF, 0x3ffff)
    p.s("s_add_u32", sVOFF, sT0OFF, 2 * 8192)
    p.s("s_and_b32", sVOFF, sVOFF, 0x3ffff)


def k1_qproj(p):
    p.comment("---- Q projection")
    p.label("K1_QP")
    Xs = [Reg('v', 0 + 20 * k, 20) for k in range(4)]
    Wf = [vVf, vKf]

    def w_dma(cs):
        q = sub_prog()
        buf = cs % 4
        if not WQIMG:
            for j in range(4):
                q.s("s_add_u32", "m0", sW4096, LDS_W + buf * 8192 + j * 1024)
                q.s("s_lshl_b32", sWOFF, sW4096, 5)
                q.s("s_add_u32", sWOFF, sWOFF, (32 * cs + 4 * j) * 8192)
                q.buf_dma(vWd, sW, sWOFF, 0, tag=('W', cs))
            return [q.ins[0:4], q.ins[4:8], q.ins[8:12], q.ins[12:16]]
        q.s("s_add_u32", "m0", sW4096, LDS_W + buf * 8192)
        q.s("s_add_u32", sWOFF, sW4096, cs * 8192)
        for j in range(4):
            q.buf_dma(vOo, sW, sWOFF, j * 1024, tag=('W', cs))
        if os.environ.get("QNOW", "0") == "1":
            return []
        return [q.ins[0:3], q.ins[3:4], q.ins[4:5], q.ins[5:6]]

    def x_load(cs):
        q = sub_prog()
        for n in range(5):
            q.buf_load(Xs[cs % 4].sub(4 * n, 4), vXo.sub(n), sX, sXOFF[cs // 4], (cs % 4) * 1024, tag=('X', cs))
        if os.environ.get("QNOX", "0") == "1":
            return []
        return [[i] for i in q.ins]

    def tr_list(cs):
        q = sub_prog()
        buf = cs % 4
        for T in range(8):
            u, e = T // 2, T % 2
            for e2 in range(2):
                q.ds_read("ds_read_b64_tr_b16", Wf[cs % 2].sub(T * 4 + 2 * e2, 2), vWa.sub(u),
                          buf * 8192 + e2 * 1024 + 8 * e)
        return q.ins

    for k in range(4):
        p.s("s_mov_b32", sXOFF[k], k * 4096)
    p.wait(lgkm=0)
    p.barrier()
    for cs in range(4):
        for grp in w_dma(cs):
            p.ins += grp
    for cs in range(3):
        for grp in x_load(cs):
            p.ins += grp
    if KVLATE:
        p.s("s_cmp_lg_u32", None, sKVF, 0)
        p.branch("s_cbranch_scc1", "K1_KVSKIP")
        kv_prefill(p)
        p.s("s_mov_b32", sKVF, 1)
        p.wait(vm=24)
        p.branch("s_branch", "K1_KVJ")
        p.label("K1_KVSKIP")
        p.wait(vm=0)
        p.label("K1_KVJ")
    p.wait_tag(('W', 0))
    p.wait(lgkm=0)
    p.barrier()
    p.ins += tr_list(0)
    for cs in range(16):
        if cs + 1 < 16:
            p.wait_tag(('W', cs + 1))
        p.wait(lgkm=0)
        p.barrier()
        groups = []
        if cs + 4 < 16:
            groups += w_dma(cs + 4)
        if cs + 3 < 16:
            groups += x_load(cs + 3)
        m = sub_prog()
        for n in range(5):
            for T in range(8):
                m.mfma16(O_(T, n), Wf[cs % 2].sub(T * 4, 4), Xs[cs % 4].sub(4 * n, 4),
                         O_(T, n) if cs > 0 else 0)
        tr = tr_list(cs + 1) if cs + 1 < 16 else []
        seq = []
        nm = len(m.ins)
        pos = {}
        if os.environ.get("QP_IL", "1") == "0":
            for g in groups:
                p.ins += g
            groups = []
        for k, g in enumerate(groups):
            pos.setdefault(2 + (k * (nm - 4)) // max(1, len(groups)), []).extend(g)
        for k, t in enumerate(tr):
            pos.setdefault(1 + k * 2, []).append(t)
        for k, mi in enumerate(m.ins):
            seq.append(mi)
            seq += pos.get(k, [])
        p.ins += seq
    if WOIN:
        p.s("s_cmp_lg_u32", None, sWOFLAG, 0)
        p.branch("s_cbranch_scc1", "K1_WOSKIP")
        p.s("s_lshr_b32", sT2, sW4096, 2)
        for m in range(8):
            p.s("s_add_u32", sT1, sT2, 2048 * m)
            p.buf_store(V(164 + 4 * m, 4), vOo, sWOD, sT1, 0)
        p.s("s_mov_b32", sWOFLAG, 1)
        p.label("K1_WOSKIP")
    p.s("s_cmp_lg_u32", None, sDEST, 0)
    p.branch("s_cbranch_scc1", "K1_QSTASH")
    k = 0
    for n in range(5):
        for ds in range(4):
            for half in range(2):
                src = O_(2 * ds + half, n)
                t = V((k % 4) * 8, 6)
                k += 1
                for r in range(4):
                    p.v("v_accvgpr_read_b32", t.sub(r), src.sub(r))
                for r in range(4):
                    p.v("v_mul_f32", t.sub(r), sC, t.sub(r))
                p.v("v_cvt_pk_bf16_f32", t.sub(4), t.sub(0), t.sub(1))
                p.v("v_cvt_pk_bf16_f32", t.sub(5), t.sub(2), t.sub(3))
                p.v("v_accvgpr_write_b32", Q_(n, ds).sub(2 * half), t.sub(4))
                p.v("v_accvgpr_write_b32", Q_(n, ds).sub(2 * half + 1), t.sub(5))
    p.s("s_cmp_eq_u32", None, sTYPE, 0)
    p.branch("s_cbranch_scc1", "K1_QDONE")
    p.s("s_mov_b32", sDEST, 1)
    p.s("s_mov_b32", sT3, 1)
    k1_xw_setup(p, sT3)
    p.branch("s_branch", "K1_QP")
    p.label("K1_QSTASH")
    k = 0
    for n in range(5):
        for ds in range(4):
            t = V((k % 4) * 12, 12)
            k += 1
            for half in range(2):
                for r in range(4):
                    p.v("v_accvgpr_read_b32", t.sub(4 * half + r), O_(2 * ds + half, n).sub(r))
            for r in range(8):
                p.v("v_mul_f32", t.sub(r), sC, t.sub(r))
            for r in range(4):
                p.v("v_cvt_pk_bf16_f32", t.sub(8 + r), t.sub(2 * r), t.sub(2 * r + 1))
            p.s("s_add_u32", sT1, sW5120x4, (n * 4 + ds) * 1024)
            p.buf_store(t.sub(8, 4), vOo, sQS, sT1, 0)
    p.label("K1_QDONE")


def k1_acc_init(p):
    for k in range(160):
        p.v("v_accvgpr_write_b32", aO.sub(k), 0)
    for k in range(20):
        p.v("v_mov_b32", vL.sub(k), 0)
        p.v("v_mov_b32", vNM.sub(k), 0)


def k1_stash_load(p):
    for n in range(5):
        for ds in range(4):
            p.s("s_add_u32", sT1, sW5120x4, (n * 4 + ds) * 1024)
            p.buf_load(Q_(n, ds), vOo, sQS, sT1, 0)
    p.wait(vm=0)


def kfrag_reads(slot):
    q = sub_prog()
    for kt in range(2):
        for ds in range(4):
            q.ds_read("ds_read_b128", Kf_(kt, ds), vKa.sub(ds), LDS_K + slot * 8192 + kt * 4096)
    return q.ins


def vfrag_reads(slot):
    q = sub_prog()
    for T in range(8):
        u, e = T // 2, T % 2
        for e2 in range(2):
            q.ds_read("ds_read_b64_tr_b16", Vf_(T).sub(2 * e2, 2), vVa.sub(u),
                      LDS_V + slot * 8192 + e2 * 4096 + 8 * e)
    return q.ins


def qk_list(buf, n):
    q = sub_prog()
    for ds in range(4):
        for kt in range(2):
            q.mfma16(S_(buf, kt, n), Kf_(kt, ds), Q_(n, ds), S_(buf, kt, n) if ds > 0 else vNM.sub(4 * n, 4))
    return q.ins


def sm_list(buf, n):
    q = sub_prog()
    for kt in range(2):
        for r in range(4):
            s = S_(buf, kt, n).sub(r)
            q.v("v_exp_f32", s, s)
    for kt in range(2):
        for rr in range(2):
            q.v("v_cvt_pk_bf16_f32", vP.sub(n * 4 + 2 * kt + rr), S_(buf, kt, n).sub(2 * rr), S_(buf, kt, n).sub(2 * rr + 1))
    return q.ins


def pv_list(n):
    q = sub_prog()
    for T in range(8):
        q.mfma16(O_(T, n), Vf_(T), vP.sub(n * 4, 4), O_(T, n))
    q.mfma16(vL.sub(4 * n, 4), vONE, vP.sub(n * 4, 4), vL.sub(4 * n, 4))
    return q.ins


def mx_list(buf, n):
    q = sub_prog()
    m = vMNEW.sub(n)
    a, b = S_(buf, 0, n), S_(buf, 1, n)
    q.v("v_max3_f32", m, a.sub(0), a.sub(1), a.sub(2))
    q.v("v_max3_f32", m, m, a.sub(3), b.sub(0))
    q.v("v_max3_f32", m, m, b.sub(1), b.sub(2))
    q.v("v_max_f32", m, m, b.sub(3))
    return q.ins


def xlane_max(p, n):
    m = vMNEW.sub(n)
    t = vTMP.sub(n)
    p.v("v_mov_b32", t, m)
    p.add(Ins(f"v_permlane32_swap_b32 {t}, {m}", 'perm', [t, m], [t, m]))
    p.v("v_max_f32", m, m, t)
    p.v("v_mov_b32", t, m)
    p.add(Ins(f"v_permlane16_swap_b32 {t}, {m}", 'perm', [t, m], [t, m]))
    p.v("v_max_f32", m, m, t)


rescale_sites = []
INSTR = os.environ.get("INSTR", "0") == "1"
sST = S(76, 4)
sTM = S(80, 2)
sSTI = S(82)


def stamp_setup(p):
    if not INSTR:
        return
    p.s("s_lshl_b32", sT1, sWG, 9)
    p.s("s_add_u32", sT1, sT1, 1 << 27)
    p.s("s_add_u32", sST.sub(0), sWS.sub(0), sT1)
    p.s("s_addc_u32", sST.sub(1), sWS.sub(1), 0)
    p.s("s_and_b32", sST.sub(1), sST.sub(1), 0xffff)
    p.s("s_mov_b32", sST.sub(2), 512)
    p.s("s_mov_b32", sST.sub(3), 0x20000)
    p.s("s_lshr_b32", sSTI, sW4096, 4)


def stamp(p):
    if not INSTR:
        return
    p.raw(f"s_memtime {sTM}", wr=[sTM])
    p.wait(lgkm=0)
    p.v("v_mov_b32", vT.sub(6), sTM.sub(0))
    p.v("v_mov_b32", vT.sub(7), sTM.sub(1))
    p.v("v_mov_b32", vT.sub(5), sSTI)
    p.buf_store(vT.sub(6, 2), vT.sub(5), sST, 0, 0)
    p.s("s_add_u32", sSTI, sSTI, 8)


NODMA = os.environ.get("NODMA", "0") == "1"


def iteration(p, tm, do_qk=True, do_sm=True, kdma=True, vdma=True, first=False, pre_k=None, pre_v=None, hook=None):
    cur = tm % 2
    nxt = 1 - cur
    p.wait(vm=int(os.environ.get("WAITVM", "16")), lgkm=0)
    if os.environ.get("NOBAR", "0") != "1":
        p.barrier()
    if hook:
        hook(p)
    dg = []
    if kdma:
        q = sub_prog()
        if pre_k:
            pre_k(q)
        q.s("s_add_u32", "m0", sW4096, LDS_K + ((tm + 1) % 4) * 8192)
        q.nop(0)
        q.buf_dma(vKd.sub(0), sK, sKOFF, 0, flags=KVFLAGS)
        dg.append(q.ins)
        for j in range(1, 4):
            q = sub_prog()
            q.buf_dma(vKd.sub(j), sK, sKOFF, j * 1024, flags=KVFLAGS)
            if j == 3:
                q.s("s_add_u32", sKOFF, sKOFF, 8192)
                q.s("s_and_b32", sKOFF, sKOFF, 0x3ffff)
            dg.append(q.ins)
    if vdma:
        q = sub_prog()
        if pre_v:
            pre_v(q)
        q.s("s_add_u32", "m0", sW4096, LDS_V + ((tm + 3) % 4) * 8192)
        q.nop(0)
        q.buf_dma(vVd, sV, sVOFF, 0, flags=KVFLAGS)
        dg.append(q.ins)
        for j in range(1, 4):
            q = sub_prog()
            q.buf_dma(vVd, sV, sVOFF, j * 1024, flags=KVFLAGS)
            if j == 3:
                q.s("s_add_u32", sVOFF, sVOFF, 8192)
                q.s("s_and_b32", sVOFF, sVOFF, 0x3ffff)
            dg.append(q.ins)
    if NODMA:
        dg = [[i for i in g if i.kind != 'vm_dma'] for g in dg]
    while len(dg) < 8:
        dg.append([])
    if os.environ.get("MAIN_IL", "1") == "0":
        for g in dg:
            p.ins += g
        dg = [[] for _ in range(8)]
    E = []
    VR = vfrag_reads(tm % 4) if do_sm else E
    QK = [qk_list(nxt, n) if do_qk else E for n in range(5)]
    SM = [sm_list(cur, n) if do_sm else E for n in range(5)]
    PV = [pv_list(n) if do_sm else E for n in range(5)]
    MX = [mx_list(nxt, n) if do_qk else E for n in range(5)]
    KR = kfrag_reads((tm + 2) % 4) if do_qk else E
    dg = [[g] if g else [] for g in dg]
    MID = os.environ.get("MIDCHK", "0") == "1" and do_qk and do_sm and not first
    if MID:
        blocks = [
            (QK[0], VR[:8] + SM[0]),
            (QK[1], dg[0] + VR[8:] + SM[1]),
            (QK[2], dg[1] + SM[2]),
            (QK[3], dg[2] + SM[3]),
            (QK[4], dg[3] + SM[4]),
            (PV[0], dg[4] + MX[0] + MX[1]),
            (PV[1], dg[5] + MX[2] + MX[3]),
            (PV[2], dg[6] + MX[4]),
        ]

        def rest():
            return [(pv_list(3), [[Ins(i.text, i.kind, i.rd, i.wr) for i in dg[7][0]]] if dg[7] else []),
                    (pv_list(4), kfrag_reads((tm + 2) % 4))]
    else:
        blocks = [
            (QK[0], VR[:8] + SM[0]),
            (QK[1], dg[0] + VR[8:] + SM[1]),
            (PV[0], dg[1] + SM[2]),
            (QK[2], dg[2] + SM[3]),
            (PV[1], dg[3] + SM[4]),
            (QK[3], dg[4] + MX[0]),
            (PV[2], dg[5] + MX[1]),
            (QK[4], dg[6] + MX[2]),
            (PV[3], dg[7] + KR),
            (PV[4], MX[3] + MX[4]),
        ]
    if os.environ.get("NOCOMP", "0") == "1":
        for g in dg:
            p.ins += _flat(g)
        return
    for mf, fl in blocks:
        p.ins += interleave(mf, fl)
    if do_qk:
        if first:
            for n in range(5):
                xlane_max(p, n)
            for n in range(5):
                for r in range(4):
                    p.v("v_sub_f32", vNM.sub(4 * n + r), 0, vMNEW.sub(n))
                for kt in range(2):
                    for r in range(4):
                        s = S_(nxt, kt, n).sub(r)
                        p.v("v_sub_f32", s, s, vMNEW.sub(n))
        else:
            p.v("v_max3_f32", vD, vMNEW.sub(0), vMNEW.sub(1), vMNEW.sub(2))
            p.v("v_max3_f32", vD, vD, vMNEW.sub(3), vMNEW.sub(4))
            p.add(Ins(f"v_cmp_gt_f32 {sCMP}, {vD}, {sTHR}", 'valu', [vD, sTHR], [sCMP]))
            p.nop(3)
            p.s("s_cmp_lg_u64", None, sCMP, 0)
            k = len(rescale_sites)
            rescale_sites.append((k, nxt, rest if MID else None))
            p.branch("s_cbranch_scc1", f"K1_RESC{k}")
            if MID:
                for mf, fl in rest():
                    p.ins += interleave(mf, fl)
            p.label(f"K1_RESC{k}_RET")


def rescale_block(p, k, buf, rest=None):
    p.label(f"K1_RESC{k}")
    if rest is not None:
        for mf, fl in rest():
            p.ins += interleave(mf, fl)
    p.nop(15)
    for n in range(5):
        xlane_max(p, n)
    for n in range(5):
        m = vMNEW.sub(n)
        f = vTMP.sub(n)
        p.v("v_max_f32", m, 0, m)
        p.v("v_sub_f32", f, 0, m)
        p.v("v_exp_f32", f, f)
        for r in range(4):
            p.v("v_sub_f32", vNM.sub(4 * n + r), vNM.sub(4 * n + r), m)
            p.v("v_mul_f32", vL.sub(4 * n + r), vL.sub(4 * n + r), f)
        for kt in range(2):
            for r in range(4):
                s = S_(buf, kt, n).sub(r)
                p.v("v_sub_f32", s, s, m)
    k2 = 0
    for T in range(8):
        for n in range(5):
            t = vP.sub((k2 % 5) * 4, 4)
            k2 += 1
            for r in range(4):
                p.v("v_accvgpr_read_b32", t.sub(r), O_(T, n).sub(r))
            for r in range(4):
                p.v("v_mul_f32", t.sub(r), t.sub(r), vTMP.sub(n))
            for r in range(4):
                p.v("v_accvgpr_write_b32", O_(T, n).sub(r), t.sub(r))
    p.nop(3)
    p.branch("s_branch", f"K1_RESC{k}_RET")


def k1_epilogue(p):
    p.comment("---- epilogue")
    p.nop(15)
    for n in range(5):
        p.v("v_rcp_f32", vTMP.sub(n), vL.sub(4 * n))
    k = 0
    for n in range(5):
        for u in range(4):
            t = V((k % 4) * 12, 12)
            k += 1
            for e in range(2):
                for r in range(4):
                    p.v("v_accvgpr_read_b32", t.sub(4 * e + r), O_(2 * u + e, n).sub(r))
            for r in range(8):
                p.v("v_mul_f32", t.sub(r), t.sub(r), vTMP.sub(n))
            for r in range(4):
                p.v("v_cvt_pk_bf16_f32", t.sub(8 + r), t.sub(2 * r), t.sub(2 * r + 1))
            p.s("s_add_u32", sT1, sW5120, (u * 10 + n) * 1024)
            p.buf_store(t.sub(8, 4), vOo, sO, sT1, 0, flags=os.environ.get("OST", ""))


def gen_k1():
    p = Prog()
    p.label(K1)
    k1_setup(p)
    stamp_setup(p)
    p.label("K1_ROUND")
    stamp(p)
    k1_round_setup(p)
    p.s("s_and_b32", sT1, sTYPE, sRND)
    p.s("s_cmp_eq_u32", None, sT1, 0)
    p.branch("s_cbranch_scc1", "K1_DOQ")
    k1_stash_load(p)
    p.branch("s_branch", "K1_QEND")
    p.label("K1_DOQ")
    p.s("s_mov_b32", sDEST, 0)
    k1_qproj(p)
    p.label("K1_QEND")
    k1_acc_init(p)
    stamp(p)
    p.ins += kfrag_reads(0)
    iteration(p, 3, do_qk=True, do_sm=False, first=True)
    p.s("s_mov_b32", sCNT, 0)
    al = os.environ.get("ALIGN", "0")
    if al != "0":
        p.add(Ins(".p2align 6", 'comment'))
        if al == "2":
            p.raw("s_nop 0", 'nop', tag=0)
    p.label("K1_LOOP")
    iteration(p, 0)

    def prev(p):
        p.s("s_cmp_lg_u32", None, sCNT, 7)
        p.branch("s_cbranch_scc1", "K1_NSV")
        for k in range(4):
            p.s("s_mov_b32", sV.sub(k), sVN.sub(k))
        p.s("s_mov_b32", sVOFF, sT0OFF)
        p.label("K1_NSV")
    iteration(p, 1, pre_v=prev)
    iteration(p, 2)
    p.s("s_cmp_eq_u32", None, sCNT, 7)
    p.branch("s_cbranch_scc1", "K1_LAST")

    def prek(p):
        p.s("s_cmp_lg_u32", None, sCNT, 6)
        p.branch("s_cbranch_scc1", "K1_NSK")
        for k in range(4):
            p.s("s_mov_b32", sK.sub(k), sKN.sub(k))
        p.s("s_mov_b32", sKOFF, sT0OFF)
        p.label("K1_NSK")
    iteration(p, 3, pre_k=prek)
    p.s("s_add_u32", sCNT, sCNT, 1)
    p.branch("s_branch", "K1_LOOP")
    p.label("K1_LAST")
    def hk(p):
        p.s("s_mov_b32", sT3, 1)
        k1_xw_setup(p, sT3)
        k1_touch(p)
        if WOMID:
            p.s("s_cmp_lg_u32", None, sRND, 0)
            p.branch("s_cbranch_scc1", "K1_WM1")
            p.s("s_cmp_ge_u32", None, sWG, 256)
            p.s("s_cselect_b32", sO.sub(0), S(sPB + 8), S(sPA + 8))
            p.s("s_cselect_b32", sO.sub(1), S(sPB + 9), S(sPA + 9))
            p.s("s_bfe_u32", sT3, sWG, (3 << 16) | 5)
            p.s("s_and_b32", sT2, sWG, 31)
            p.s("s_lshl_b32", sT2, sT2, 17)
            p.s("s_lshl_b32", sT1, sT3, 7)
            p.s("s_add_u32", sT2, sT2, sT1)
            p.s("s_add_u32", sWOD.sub(0), sO.sub(0), sT2)
            p.s("s_addc_u32", sWOD.sub(1), sO.sub(1), 0)
            p.s("s_and_b32", sWOD.sub(1), sWOD.sub(1), 0xffff)
            p.s("s_sub_u32", sWOD.sub(2), 128 * 1024, sT1)
            p.s("s_mov_b32", sWOD.sub(3), 0x20000)
            p.s("s_lshr_b32", sT2, sW4096, 6)
            p.v("v_add_u32", V(36), sT2, vLANE)
            for m in range(8):
                p.v("v_add_u32", V(37), 128 * m, V(36))
                p.v("v_lshrrev_b32", V(38), 3, V(37))
                p.v("v_bfe_u32", V(39), V(38), 1, 1)
                p.v("v_lshlrev_b32", V(39), 2, V(39))
                p.v("v_and_b32", V(37), 7, V(37))
                p.v("v_xor_b32", V(39), V(39), V(37))
                p.v("v_lshlrev_b32", V(39), 4, V(39))
                p.v("v_lshl_add_u32", V(37), V(38), 10, V(39))
                p.buf_load(V(4 * m, 4), V(37), sWOD, 0, 0, flags=" nt")
            p.label("K1_WM1")
    iteration(p, 3, do_qk=False, do_sm=True, kdma=False, vdma=False, hook=hk)
    if WOMID:
        p.s("s_cmp_lg_u32", None, sRND, 0)
        p.branch("s_cbranch_scc1", "K1_WM2")
        p.s("s_lshl_b32", sT2, sWG, 14)
        p.s("s_add_u32", sT2, sT2, WS_WO)
        p.s("s_add_u32", sWOD.sub(0), sWS.sub(0), sT2)
        p.s("s_addc_u32", sWOD.sub(1), sWS.sub(1), 0)
        p.s("s_and_b32", sWOD.sub(1), sWOD.sub(1), 0xffff)
        p.s("s_mov_b32", sWOD.sub(2), 16384)
        p.s("s_mov_b32", sWOD.sub(3), 0x20000)
        p.wait(vm=0)
        p.s("s_lshr_b32", sT2, sW4096, 2)
        for m in range(8):
            p.s("s_add_u32", sT1, sT2, 2048 * m)
            p.buf_store(V(4 * m, 4), vOo, sWOD, sT1, 0)
        p.nop(3)
        p.label("K1_WM2")
    stamp(p)
    k1_epilogue(p)
    stamp(p)
    p.s("s_mov_b32", sKN.sub(2), 0)
    p.s("s_mov_b32", sVN.sub(2), 0)
    p.s("s_add_u32", sRND, sRND, 1)
    p.s("s_cmp_lt_u32", None, sRND, 2)
    p.branch("s_cbranch_scc1", "K1_ROUND")
    p.label("K1_END")
    p.raw("s_endpgm", 'end')
    for k, buf, rest in rescale_sites:
        rescale_block(p, k, buf, rest)
    ins = insert_waits(p.ins)
    ins = fix_hazards(ins)
    return ins


def gen_k2():
    p = Prog()
    p.label(K2)
    sP = S(4, 2)
    sPb = S(6, 2)
    sOUT = S(8, 2)
    sWSP = S(10, 2)
    sWO = S(12, 4)
    sOO = S(16, 4)
    sOT = S(20, 4)
    sWV = S(24)
    sBUF = S(25)
    sKO = S(26)
    t1, t2, t3, t4 = S(27), S(28), S(29), S(30)
    sNT = S(31)
    sBLK = S(32)
    sBB = S(33)
    vLn = V(0)
    vBo = V(2, 3)
    vAd = V(12)
    vAa = V(14, 2)
    vAf = [V(16, 16), V(32, 16)]
    NB = int(os.environ.get("K2_NB", "5"))
    vBf = [V(48 + 40 * k, 40) for k in range(NB)]
    vT_ = V(208, 12)
    vSt = V(100, 10)
    vSt0 = V(248)
    vRa = V(249)
    vWa_ = V(250)
    vTch = V(252, 2)
    aC = A(0, 160)

    def C_(T, n):
        return aC.sub(T * 40 + n * 4, 4)

    p.s("s_cmp_ge_u32", None, sWG, 256)
    p.branch("s_cbranch_scc1", "K2_END")
    p.raw("s_load_dwordx2 s[4:5], s[0:1], 32", wr=['s4', 's5'])
    p.raw("s_load_dwordx2 s[6:7], s[0:1], 72", wr=['s6', 's7'])
    p.raw("s_load_dwordx2 s[8:9], s[0:1], 80", wr=['s8', 's9'])
    p.raw("s_load_dwordx2 s[10:11], s[0:1], 96", wr=['s10', 's11'])
    p.v("v_lshrrev_b32", vT_.sub(0), 6, V(0))
    p.v("v_and_b32", vLn, 63, V(0))
    p.nop(1)
    p.add(Ins(f"v_readfirstlane_b32 {sWV}, {vT_.sub(0)}", 'valu', [vT_.sub(0)], [sWV]))
    p.nop(3)
    p.s("s_and_b32", t1, sWG, 7)
    p.s("s_lshr_b32", t2, sWG, 3)
    p.s("s_and_b32", sNT, t2, 7)
    p.s("s_lshr_b32", t2, t2, 3)
    p.s("s_lshl_b32", t1, t1, 2)
    p.s("s_add_u32", t1, t1, t2)
    p.s("s_lshr_b32", sBLK, t1, 4)
    p.s("s_and_b32", sBB, t1, 15)
    p.s("s_lshl_b32", sBUF, sWV, 14)
    i_, g_, rp, cc, t5, t6 = (vT_.sub(k) for k in range(1, 7))
    p.v("v_and_b32", i_, 15, vLn)
    p.v("v_lshrrev_b32", g_, 4, vLn)
    p.v("v_bfe_u32", rp, vLn, 2, 2)
    p.v("v_and_b32", cc, 3, vLn)
    p.v("v_lshlrev_b32", t6, 4, vLn)
    for k in range(3):
        p.v("v_add_u32", vBo.sub(k), 4096 * k, t6)
    p.v("v_lshlrev_b32", vAd, 4, vLn)
    for u in range(2):
        p.v("v_lshrrev_b32", t5, 1, rp)
        p.v("v_xor_b32", t5, u, t5)
        p.v("v_lshl_add_u32", t5, t5, 2, cc)
        p.v("v_lshlrev_b32", t5, 4, t5)
        p.v("v_lshl_add_u32", t6, g_, 3, rp)
        p.v("v_lshl_add_u32", t6, t6, 7, t5)
        p.v("v_add_u32", vAa.sub(u), sBUF, t6)
    p.v("v_lshlrev_b32", t6, 4, g_)
    p.v("v_lshl_add_u32", vSt0, i_, 11, t6)
    p.v("v_lshlrev_b32", vRa, 4, vLn)
    p.wait(lgkm=0)
    p.s("s_lshl_b32", t1, sNT, 7)
    p.s("s_lshl_b32", t2, sBLK, 3)
    p.s("s_add_u32", t2, t2, sNT)
    p.s("s_lshl_b32", t2, t2, 7)
    p.s("s_lshl_b32", t3, sWV, 5)
    p.s("s_add_u32", t2, t2, t3)
    p.s("s_lshl_b32", t2, t2, 12)
    p.s("s_add_u32", t2, t2, WS_WO)
    p.s("s_add_u32", sWO.sub(0), sWSP.sub(0), t2)
    p.s("s_addc_u32", sWO.sub(1), sWSP.sub(1), 0)
    p.s("s_and_b32", sWO.sub(1), sWO.sub(1), 0xffff)
    p.s("s_mov_b32", sWO.sub(2), 32 * 4096)
    p.s("s_mov_b32", sWO.sub(3), 0x20000)
    p.s("s_lshl_b32", t2, sBLK, 4)
    p.s("s_add_u32", t2, t2, sBB)
    p.s("s_lshl_b32", t2, t2, 5)
    p.s("s_lshl_b32", t3, sWV, 3)
    p.s("s_add_u32", t2, t2, t3)
    p.s("s_mul_i32", t2, t2, 40960)
    p.s("s_add_u32", sOO.sub(0), sWSP.sub(0), t2)
    p.s("s_addc_u32", sOO.sub(1), sWSP.sub(1), 0)
    p.s("s_and_b32", sOO.sub(1), sOO.sub(1), 0xffff)
    p.s("s_mov_b32", sOO.sub(2), 8 * 40960)
    p.s("s_mov_b32", sOO.sub(3), 0x20000)
    p.s("s_mul_i32", t2, sBB, 160 * 2048)
    p.s("s_lshl_b32", t3, sBLK, 10)
    p.s("s_add_u32", t3, t3, t1)
    p.s("s_add_u32", t2, t2, t3)
    p.s("s_add_u32", sOT.sub(0), sOUT.sub(0), t2)
    p.s("s_addc_u32", sOT.sub(1), sOUT.sub(1), 0)
    p.s("s_and_b32", sOT.sub(1), sOT.sub(1), 0xffff)
    p.s("s_sub_u32", sOT.sub(2), 160 * 2048, t3)
    p.s("s_mov_b32", sOT.sub(3), 0x20000)
    p.s("s_lshl_b32", sKO, sWV, 20)

    def a_dma(ks):
        gs = []
        for j in range(4):
            q = sub_prog()
            if j == 0:
                q.s("s_add_u32", "m0", sBUF, (ks % 4) * 4096)
                q.s("s_mov_b32", t4, ks * 4096)
            q.buf_dma(vAd, sWO, t4, j * 1024, tag=('A', ks))
            gs.append(q.ins)
        return gs

    def b_load(ks):
        gs = []
        for n in range(10):
            q = sub_prog()
            q.s("s_mov_b32", t3, ks * 10240)
            q.buf_load(vBf[ks % NB].sub(4 * n, 4), vBo.sub(n // 4), sOO, t3, (n % 4) * 1024, tag=('B', ks))
            gs.append(q.ins)
        return gs

    def tr_list(ks):
        q = sub_prog()
        for T in range(4):
            u, e = T // 2, T % 2
            for e2 in range(2):
                q.ds_read("ds_read_b64_tr_b16", vAf[ks % 2].sub(T * 4 + 2 * e2, 2), vAa.sub(u),
                          (ks % 4) * 4096 + e2 * 512 + 8 * e)
        return q.ins

    p.v("v_lshlrev_b32", vTch.sub(0), 7, vLn)
    p.v("v_lshlrev_b32", vTch.sub(1), 10, vLn)
    for ks in range(4):
        for g in a_dma(ks):
            p.ins += g
    for ks in range(NB - 1):
        for g in b_load(ks):
            p.ins += g
    for k in range(16 if os.environ.get("TOUCH2", "0") == "1" else 0):
        p.s("s_add_u32", t3, sKO, k * 65536)
        p.buf_load(V(255), vTch.sub(1), sWO, t3, 0)
    for k in range(40 if os.environ.get("TOUCH2", "0") == "1" else 0):
        p.s("s_mov_b32", t3, k * 8192)
        p.buf_load(V(255), vTch.sub(0), sOO, t3, 0)
    p.wait_tag(('A', 0))
    p.ins += tr_list(0)
    for ks in range(32):
        if ks + 1 < 32:
            p.wait_tag(('A', ks + 1))
        p.wait(lgkm=0)
        groups = []
        if ks + 4 < 32:
            groups += a_dma(ks + 4)
        if ks + NB - 1 < 32:
            groups += b_load(ks + NB - 1)
        m = sub_prog()
        for n in range(10):
            for T in range(4):
                m.mfma16(C_(T, n), vAf[ks % 2].sub(T * 4, 4), vBf[ks % NB].sub(4 * n, 4),
                         C_(T, n) if ks > 0 else 0)
        tr = tr_list(ks + 1) if ks + 1 < 32 else []
        nm = len(m.ins)
        pos = {}
        for k, g in enumerate(groups):
            pos.setdefault(1 + (k * (nm - 3)) // max(1, len(groups)), []).extend(g)
        for k, t in enumerate(tr):
            pos.setdefault(2 + k * 2, []).append(t)
        for k, mi in enumerate(m.ins):
            p.ins.append(mi)
            p.ins += pos.get(k, [])
    p.nop(15)
    p.wait(vm=0, lgkm=0)
    p.barrier()
    for n in range(10):
        p.v("v_add_u32", vSt.sub(n), n * 32768, vSt0)
    for dT in range(1, 4):
        slot = 3 - dT
        p.label(f"K2_W{dT}")
        p.s("s_add_u32", t1, sWV, dT)
        p.s("s_and_b32", t1, t1, 3)
        p.s("s_mul_i32", t2, t1, 30720)
        p.s("s_add_u32", t2, t2, slot * 10240)
        p.v("v_add_u32", vWa_, t2, vRa)
        for T in range(4):
            p.s("s_cmp_lg_u32", None, t1, T)
            p.branch("s_cbranch_scc1", f"K2_W{dT}_{T}")
            for n in range(10):
                p.ds_write("ds_write_b128", vWa_, C_(T, n), n * 1024)
            p.label(f"K2_W{dT}_{T}")
    p.wait(lgkm=0)
    p.barrier()
    p.s("s_mul_i32", t2, sWV, 30720)
    p.v("v_add_u32", vWa_, t2, vRa)
    for T in range(4):
        p.s("s_cmp_lg_u32", None, sWV, T)
        p.branch("s_cbranch_scc1", f"K2_R{T}")
        u, e = T // 2, T % 2
        for n in range(10):
            t = V(48 + (n % 2) * 20, 20)
            for sl in range(3):
                p.ds_read("ds_read_b128", t.sub(4 * sl, 4), vWa_, sl * 10240 + n * 1024)
            for r in range(4):
                p.v("v_accvgpr_read_b32", t.sub(12 + r), C_(T, n).sub(r))
            for sl in range(3):
                for r in range(4):
                    p.v("v_add_f32", t.sub(12 + r), t.sub(12 + r), t.sub(4 * sl + r))
            p.v("v_cvt_pk_bf16_f32", t.sub(16), t.sub(12), t.sub(13))
            p.v("v_cvt_pk_bf16_f32", t.sub(17), t.sub(14), t.sub(15))
            p.buf_store(t.sub(16, 2), vSt.sub(n), sOT, 0, u * 64 + e * 8)
        p.wait(vm=0, lgkm=0)
        p.label(f"K2_R{T}")
    p.label("K2_END")
    p.raw("s_endpgm", 'end')
    ins = insert_waits(p.ins)
    ins = fix_hazards(ins)
    return ins


WS_XF = 64 << 20
WS_WQ = 80 << 20
WS_WO = 96 << 20
K0 = "prep_kernel"
K0_GRID = 320 + (512 if WQIMG else 0) + (512 if (WOIMG and not WOIN and not WOMID) else 0)


def gen_k0():
    p = Prog()
    p.label(K0)
    sSrc = S(8, 4)
    sDst = S(12, 4)
    t1, t2, t3, t4, t5s = S(16), S(17), S(18), S(19), S(20)
    sBl = S(21)
    sWSp = S(22, 2)
    vA = V(1)
    vK = V(5)
    a, b_, c = V(6), V(7), V(8)
    vD0 = V(9)
    p.s("s_cmp_ge_u32", None, sWG, K0_GRID)
    p.branch("s_cbranch_scc1", "K0_END")
    p.raw("s_load_dwordx2 s[22:23], s[0:1], 96", wr=['s22', 's23'])
    p.s("s_cmp_ge_u32", None, sWG, 320)
    p.branch("s_cbranch_scc1", "K0_W")
    p.s("s_cmp_ge_u32", None, sWG, 160)
    p.s("s_cselect_b32", sBl, 1, 0)
    p.s("s_mul_i32", t1, sBl, 160)
    p.s("s_sub_u32", t1, sWG, t1)
    p.s("s_mul_i32", t2, sBl, 40)
    p.s("s_add_u32", S(24), S(0), t2)
    p.s("s_addc_u32", S(25), S(1), 0)
    p.raw("s_load_dwordx2 s[4:5], s[24:25], 0", wr=['s4', 's5'])
    p.wait(lgkm=0)
    p.s("s_lshl_b32", t2, t1, 14)
    p.s("s_add_u32", sSrc.sub(0), S(4), t2)
    p.s("s_addc_u32", sSrc.sub(1), S(5), 0)
    p.s("s_and_b32", sSrc.sub(1), sSrc.sub(1), 0xffff)
    p.s("s_mov_b32", sSrc.sub(2), 16384)
    p.s("s_mov_b32", sSrc.sub(3), 0x20000)
    p.s("s_lshl_b32", t2, sWG, 14)
    p.s("s_add_u32", t2, t2, WS_XF)
    p.s("s_add_u32", sDst.sub(0), sWSp.sub(0), t2)
    p.s("s_addc_u32", sDst.sub(1), sWSp.sub(1), 0)
    p.s("s_and_b32", sDst.sub(1), sDst.sub(1), 0xffff)
    p.s("s_mov_b32", sDst.sub(2), 16384)
    p.s("s_mov_b32", sDst.sub(3), 0x20000)
    for m in range(4):
        p.v("v_add_u32", vK, 256 * m, V(0))
        p.v("v_and_b32", a, 15, vK)
        p.v("v_lshlrev_b32", a, 10, a)
        p.v("v_lshrrev_b32", b_, 6, vK)
        p.v("v_lshl_add_u32", a, b_, 6, a)
        p.v("v_bfe_u32", b_, vK, 4, 2)
        p.v("v_lshl_add_u32", V(1 + m), b_, 4, a)
    p.branch("s_branch", "K0_COPY")
    p.label("K0_W")
    p.s("s_sub_u32", t1, sWG, 320 if WQIMG else 320 - 512)
    p.s("s_cmp_ge_u32", None, t1, 512)
    p.branch("s_cbranch_scc1", "K0_WO")
    p.s("s_lshr_b32", sBl, t1, 8)
    p.s("s_mul_i32", t2, sBl, 40)
    p.s("s_add_u32", S(24), S(0), t2)
    p.s("s_addc_u32", S(25), S(1), 0)
    p.raw("s_load_dwordx2 s[4:5], s[24:25], 24", wr=['s4', 's5'])
    p.wait(lgkm=0)
    p.s("s_bfe_u32", t3, t1, (5 << 16) | 3)
    p.s("s_and_b32", t4, t1, 7)
    p.s("s_lshl_b32", t2, t4, 19)
    p.s("s_lshl_b32", t5s, t3, 8)
    p.s("s_add_u32", t2, t2, t5s)
    p.s("s_add_u32", sSrc.sub(0), S(4), t2)
    p.s("s_addc_u32", sSrc.sub(1), S(5), 0)
    p.s("s_and_b32", sSrc.sub(1), sSrc.sub(1), 0xffff)
    p.s("s_sub_u32", sSrc.sub(2), 64 * 8192, t5s)
    p.s("s_mov_b32", sSrc.sub(3), 0x20000)
    p.s("s_lshl_b32", t2, t1, 14)
    p.s("s_add_u32", t2, t2, WS_WQ)
    p.s("s_add_u32", sDst.sub(0), sWSp.sub(0), t2)
    p.s("s_addc_u32", sDst.sub(1), sWSp.sub(1), 0)
    p.s("s_and_b32", sDst.sub(1), sDst.sub(1), 0xffff)
    p.s("s_mov_b32", sDst.sub(2), 16384)
    p.s("s_mov_b32", sDst.sub(3), 0x20000)
    for m in range(4):
        p.v("v_add_u32", vK, 256 * m, V(0))
        p.v("v_lshrrev_b32", a, 4, vK)
        p.v("v_and_b32", b_, 3, a)
        p.v("v_lshlrev_b32", b_, 2, b_)
        p.v("v_and_b32", c, 15, vK)
        p.v("v_xor_b32", b_, b_, c)
        p.v("v_lshlrev_b32", b_, 4, b_)
        p.v("v_lshl_add_u32", V(1 + m), a, 13, b_)
    p.branch("s_branch", "K0_COPY")
    p.label("K0_WO")
    p.s("s_sub_u32", t1, t1, 512)
    p.s("s_lshr_b32", sBl, t1, 8)
    p.s("s_mul_i32", t2, sBl, 40)
    p.s("s_add_u32", S(24), S(0), t2)
    p.s("s_addc_u32", S(25), S(1), 0)
    p.raw("s_load_dwordx2 s[4:5], s[24:25], 32", wr=['s4', 's5'])
    p.wait(lgkm=0)
    p.s("s_bfe_u32", t3, t1, (3 << 16) | 5)
    p.s("s_and_b32", t4, t1, 31)
    p.s("s_lshl_b32", t2, t4, 17)
    p.s("s_lshl_b32", t5s, t3, 7)
    p.s("s_add_u32", t2, t2, t5s)
    p.s("s_add_u32", sSrc.sub(0), S(4), t2)
    p.s("s_addc_u32", sSrc.sub(1), S(5), 0)
    p.s("s_and_b32", sSrc.sub(1), sSrc.sub(1), 0xffff)
    p.s("s_sub_u32", sSrc.sub(2), 128 * 1024, t5s)
    p.s("s_mov_b32", sSrc.sub(3), 0x20000)
    p.s("s_lshl_b32", t2, t1, 14)
    p.s("s_add_u32", t2, t2, WS_WO)
    p.s("s_add_u32", sDst.sub(0), sWSp.sub(0), t2)
    p.s("s_addc_u32", sDst.sub(1), sWSp.sub(1), 0)
    p.s("s_and_b32", sDst.sub(1), sDst.sub(1), 0xffff)
    p.s("s_mov_b32", sDst.sub(2), 16384)
    p.s("s_mov_b32", sDst.sub(3), 0x20000)
    for m in range(4):
        p.v("v_add_u32", vK, 256 * m, V(0))
        p.v("v_lshrrev_b32", a, 3, vK)
        p.v("v_bfe_u32", b_, a, 1, 1)
        p.v("v_lshlrev_b32", b_, 2, b_)
        p.v("v_and_b32", c, 7, vK)
        p.v("v_xor_b32", b_, b_, c)
        p.v("v_lshlrev_b32", b_, 4, b_)
        p.v("v_lshl_add_u32", V(1 + m), a, 10, b_)
    p.label("K0_COPY")
    p.v("v_lshlrev_b32", vD0, 4, V(0))
    for m in range(4):
        p.buf_load(V(12 + 4 * m, 4), V(1 + m), sSrc, 0, 0, flags=os.environ.get("K0LD", " nt"))
    for m in range(4):
        p.s("s_mov_b32", t1, 4096 * m)
        p.buf_store(V(12 + 4 * m, 4), vD0, sDst, t1, 0, flags=os.environ.get("K0ST", ""))
    p.label("K0_END")
    p.raw("s_endpgm", 'end')
    ins = insert_waits(p.ins)
    ins = fix_hazards(ins)
    return ins


HEADER = open(os.path.join(os.path.dirname(__file__), "header.txt")).read()


def descriptor(name, vg, sg, acc):
    return f""".amdhsa_kernel {name}
  .amdhsa_next_free_vgpr {vg}
  .amdhsa_next_free_sgpr {sg}
  .amdhsa_accum_offset {acc}
  .amdhsa_group_segment_fixed_size 0
  .amdhsa_kernarg_size 104
  .amdhsa_user_sgpr_count 2
  .amdhsa_user_sgpr_kernarg_segment_ptr 1
  .amdhsa_system_sgpr_workgroup_id_x 1
.end_amdhsa_kernel
"""


def main():
    k1 = gen_k1()
    k2 = gen_k2()
    out = HEADER
    out += f"; @launch kernel={K0} grid=({K0_GRID},1,1) block=(256,1,1) lds=0\n"
    out += f"; @launch kernel={K1} grid=(512,1,1) block=(128,1,1) lds={LDS_BYTES}\n"
    out += f"; @launch kernel={K2} grid=(256,1,1) block=(256,1,1) lds=122880\n"
    out += '.amdgcn_target "amdgcn-amd-amdhsa--gfx950"\n.text\n'
    out += f".globl {K1}\n.p2align 8\n.type {K1},@function\n"
    out += render(k1)
    out += f".globl {K2}\n.p2align 8\n.type {K2},@function\n"
    out += render(k2)
    out += f".globl {K0}\n.p2align 8\n.type {K0},@function\n"
    out += render(gen_k0())
    out += '.section .rodata,"a"\n.p2align 6\n'
    out += descriptor(K1, 512, 102, 256)
    out += ".p2align 6\n"
    out += descriptor(K2, 512, 96, 256)
    out += ".p2align 6\n"
    out += descriptor(K0, 32, 32, 32)
    dst = sys.argv[1] if len(sys.argv) > 1 else os.path.join(os.path.dirname(__file__), "..", "cdna_kernels", NAME + ".s")
    open(dst, "w").write(out)
    print("wrote", dst, len(out), "bytes;", len(k1), "+", len(k2), "instructions")


if __name__ == "__main__":
    main()
```
